```python
import torch

def _softmax(x, axis=-1):
    return torch.softmax(x, dim=axis)
def _gelu(x):
    return torch.nn.functional.gelu(x, approximate="tanh")
def _silu(x):
    return torch.nn.functional.silu(x)
def _sigmoid(x):
    return torch.sigmoid(x)
def _layernorm(x, axis=-1, eps=1e-5):
    m = x.mean(dim=axis, keepdim=True)
    v = x.var(dim=axis, keepdim=True, unbiased=False)
    return (x - m) / torch.sqrt(v + eps)
def _scatter_add(tgt, idx, src, axis=0):
    return tgt.clone().index_add_(axis, idx, src)
def _segment_sum(src, seg, n):
    out = torch.zeros((n,) + src.shape[1:], dtype=src.dtype)
    return out.index_add_(0, seg, src)
def _pad(x, pw):
    flat = tuple(v for pair in reversed(pw) for v in pair)
    return torch.nn.functional.pad(x, flat)

kernel_name = 'recurrent_scan__sliding_block__glu_gated_glu__prompt'

def setup_inputs():

    _w = (lambda a: (lambda t: t.to(torch.bfloat16) if t.is_floating_point() else t)(torch.as_tensor(a)))
    def _A_setup():
        B, S, D = 1, 2048, 512
        return {
            "x": _w((lambda *s: torch.randn(*s, dtype=torch.bfloat16) * 0.05)(B, S, D)),
            "wqkv": _w((lambda *s: torch.randn(*s, dtype=torch.bfloat16) * 0.05)(D, 3 * D)),
            "wo": _w((lambda *s: torch.randn(*s, dtype=torch.bfloat16) * 0.05)(D, D)),
        }
    _A_in = _A_setup()

    def _B_setup():
        B, S, D, F = 1, 2048, 512, 1792
        return {
            "x": _w((lambda *s: torch.randn(*s, dtype=torch.bfloat16) * 0.05)(B, S, D)),
            "w_gate": _w((lambda *s: torch.randn(*s, dtype=torch.bfloat16) * 0.05)(D, F)),
            "w_up": _w((lambda *s: torch.randn(*s, dtype=torch.bfloat16) * 0.05)(D, F)),
            "w_down": _w((lambda *s: torch.randn(*s, dtype=torch.bfloat16) * 0.05)(F, D)),
        }
    _B_in = _B_setup()

    return {
        "A_x": _A_in["x"],
        "A_wqkv": _A_in["wqkv"],
        "A_wo": _A_in["wo"],
        "B_x": _B_in["x"],
        "B_w_gate": _B_in["w_gate"],
        "B_w_up": _B_in["w_up"],
        "B_w_down": _B_in["w_down"],
    }

def reference(A_x, A_wqkv, A_wo, B_x, B_w_gate, B_w_up, B_w_down):
    def _A_ref(x, wqkv, wo):
        B, S, D = x.shape
        H = 32; Dh = D // H; W = 256
        qkv = (lambda x, *d: x.permute(*d))((x @ wqkv).reshape(B, S, 3, H, Dh), 2, 0, 3, 1, 4)
        q, k, v = qkv[0], qkv[1], qkv[2]
        scores = torch.einsum("bhqd,bhkd->bhqk", q, k) * (Dh ** -0.5)
        idx = torch.arange(S)
        mask = (idx[:, None] - idx[None, :] >= 0) & (idx[:, None] - idx[None, :] < W)
        scores = torch.where(mask[None, None], scores, -1e9)
        p = _softmax(scores, axis=-1)
        o = torch.einsum("bhqk,bhkd->bhqd", p, v)
        return (lambda x, *d: x.permute(*d))(o, 0, 2, 1, 3).reshape(B, S, D) @ wo

    def _B_ref(x, w_gate, w_up, w_down):
        g = torch.einsum("bsd,df->bsf", x, w_gate)
        u = torch.einsum("bsd,df->bsf", x, w_up)
        h = _sigmoid(g) * u
        return torch.einsum("bsf,fd->bsd", h, w_down)

    x = A_x
    xn = _layernorm(x, axis=-1)
    s = _A_ref(xn, A_wqkv, A_wo)
    g = _silu(_B_ref(xn, B_w_gate, B_w_up, B_w_down))
    return x + s * g
```

```python
import re

REG_RE = re.compile(r'\b([vas])(?:(\d+)|\[(\d+):(\d+)\])')

def regs_of(tok):
    out = set()
    for m in REG_RE.finditer(tok):
        f = m.group(1)
        if m.group(2) is not None:
            out.add((f, int(m.group(2))))
        else:
            for i in range(int(m.group(3)), int(m.group(4)) + 1):
                out.add((f, i))
    for sp in ('vcc', 'exec', 'm0', 'scc'):
        if re.search(r'\b' + sp + r'(_lo|_hi)?\b', tok):
            out.add((sp, 0))
    return out

TRANS = ('v_exp_f32', 'v_log_f32', 'v_rcp_f32', 'v_rsq_f32', 'v_sqrt_f32', 'v_sin_f32', 'v_cos_f32')

class I:
    __slots__ = ('text', 'mn', 'kind', 'defs', 'uses', 'srcc', 'cost', 'tag', 'ws')
    def __init__(self, text, tag=None):
        self.text = text.strip()
        self.tag = tag
        t = self.text.split(';')[0].strip()
        parts = t.split(None, 1)
        mn = parts[0]
        self.mn = mn
        ops = [o.strip() for o in split_ops(parts[1])] if len(parts) > 1 else []
        self.srcc = set()
        defs, uses = set(), set()
        self.ws = 1
        if mn.startswith('v_mfma'):
            self.kind = 'mfma'
            defs = regs_of(ops[0]); uses = regs_of(ops[1]) | regs_of(ops[2]) | regs_of(ops[3]); self.srcc = regs_of(ops[3])
            self.cost = 8
        elif mn.startswith('v_'):
            self.kind = 'valu'
            self.cost = 8 if mn.replace('_e32', '').replace('_e64', '') in TRANS else 4
            defs = regs_of(ops[0])
            rest = ops[1:]
            if mn.startswith(('v_add_co', 'v_sub_co', 'v_addc_co', 'v_subb_co', 'v_subrev_co')):
                defs |= regs_of(ops[1]); rest = ops[2:]
            for o in rest: uses |= regs_of(o)
            if mn.startswith(('v_fmac', 'v_dot2c', 'v_permlane', 'v_writelane')) or 'dpp' in mn or 'row_' in t or 'quad_perm' in t:
                uses |= regs_of(ops[0])
            if mn.startswith('v_permlane') and 'swap' in mn:
                defs |= regs_of(ops[1])
        elif mn.startswith('ds_'):
            self.kind = 'ds'; self.cost = 4
            if mn.startswith(('ds_read', 'ds_bpermute', 'ds_permute', 'ds_swizzle')):
                defs = regs_of(ops[0])
                for o in ops[1:]: uses |= regs_of(o)
            else:
                for o in ops: uses |= regs_of(o)
        elif mn.startswith(('buffer_', 'global_')):
            self.kind = 'vmem'; self.cost = 4
            is_lds = bool(re.search(r'\blds\b', t)) or '_lds_' in mn
            if 'load' in mn and not is_lds:
                defs = regs_of(ops[0])
                for o in ops[1:]: uses |= regs_of(o)
            else:
                for o in ops: uses |= regs_of(o)
                if is_lds: uses.add(('m0', 0))
        elif mn.startswith('s_'):
            self.kind = 'salu'; self.cost = 4
            if mn == 's_nop':
                self.ws = int(ops[0], 0) + 1; self.cost = 4 * self.ws
            elif mn.startswith(('s_waitcnt', 's_barrier', 's_branch', 's_cbranch', 's_endpgm', 's_setprio', 's_sleep')):
                if mn.startswith('s_cbranch_vcc'): uses.add(('vcc', 0))
            elif mn.startswith('s_cmp'):
                for o in ops: uses |= regs_of(o)
            elif mn.startswith(('s_load', 's_memtime', 's_memrealtime')):
                self.kind = 'smem'
                defs = regs_of(ops[0])
                for o in ops[1:]: uses |= regs_of(o)
            else:
                defs = regs_of(ops[0])
                for o in ops[1:]: uses |= regs_of(o)
                if 'saveexec' in mn: defs.add(('exec', 0))
        else:
            raise ValueError('unknown instr ' + text)
        self.defs, self.uses = defs, uses

def split_ops(s):
    out, depth, cur = [], 0, ''
    for ch in s:
        if ch == '[': depth += 1
        if ch == ']': depth -= 1
        if ch == ',' and depth == 0:
            out.append(cur); cur = ''
        else:
            cur += ch
    out.append(cur)
    return out

def vec(r):
    return {x for x in r if x[0] in 'va' and len(x[0]) == 1}
def sca(r):
    return {x for x in r if x[0] in ('s', 'vcc')}

class Asm:
    def __init__(self):
        self.out = []
        self.hist = []
        self.vm = []
        self.lg = []
        self.smem = set()
        self.nops = 0
        self.cycles = 0
        self.mfma_free = 0
        self.count = {}
        self.issued = {}

    def raw(self, text):
        self.out.append(text)
    def label(self, name):
        self.out.append(name + ':')
    def comment(self, text):
        self.out.append('  ; ' + text)

    def _push(self, ins):
        self.out.append('  ' + ins.text)
        self.hist.append(ins)
        if len(self.hist) > 40: self.hist.pop(0)
        if ins.kind == 'mfma':
            self.cycles = max(self.cycles, self.mfma_free)
            self.mfma_free = self.cycles + (32 if '32x32' in ins.mn else 16)
        self.cycles += ins.cost
        self.count[ins.kind] = self.count.get(ins.kind, 0) + 1

    def _need_states(self, ins):
        need = 0
        dist = 0
        mn = ins.mn
        iv_use, iv_def = vec(ins.uses), vec(ins.defs)
        for p in reversed(self.hist):
            req = 0
            if p.kind == 'mfma':
                np_ = 8 if '32x32' in p.mn else 4
                big = {8: 12, 4: 8}[np_]; ovl = {8: 10, 4: 6}[np_]; war = {8: 7, 4: 3}[np_]
                if ins.kind == 'mfma':
                    ab = ins.uses - ins.srcc if not (ins.srcc & (ins.uses - ins.srcc)) else ins.uses
                    ops = split_ops(ins.text.split(None, 1)[1])
                    ab = regs_of(ops[1]) | regs_of(ops[2])
                    if p.defs & ab: req = max(req, big)
                    if p.defs & ins.srcc and not (p.defs == ins.srcc and p.mn == ins.mn): req = max(req, ovl)
                    if p.defs & ins.defs and not (p.defs & ins.srcc): req = max(req, ovl)
                else:
                    if p.defs & (iv_use | iv_def): req = max(req, big)
                    if ins.kind == 'valu' and (p.srcc & iv_def): req = max(req, war)
                    if ins.kind in ('ds', 'vmem') and (p.srcc & iv_def): req = max(req, war)
            elif p.kind == 'valu':
                pv = vec(p.defs)
                if ins.kind == 'mfma' and pv & iv_use: req = max(req, 2)
                if ins.kind == 'valu':
                    if p.cost == 8 and pv & iv_use: req = max(req, 1)
                    if mn.startswith('v_permlane') and pv & iv_use: req = max(req, 2)
                    if ('dpp' in mn or 'row_' in ins.text or 'quad_perm' in ins.text) and pv & iv_use: req = max(req, 2)
                    if mn.startswith(('v_readlane', 'v_readfirstlane')) and pv & iv_use: req = max(req, 1)
                    if sca(p.defs) & sca(ins.uses): req = max(req, 4 if mn.startswith(('v_readlane', 'v_writelane')) else 2)
                    if p.mn.startswith('v_dot') and not p.mn == mn and pv & (iv_use | iv_def): req = max(req, 3)
                    if p.mn.startswith('v_dot') and p.mn == mn and pv & iv_use: req = max(req, 3)
                if ins.kind in ('vmem', 'ds') and p.cost == 8 and pv & iv_use: req = max(req, 1)
                if ins.kind in ('vmem', 'ds') and p.mn.startswith('v_dot') and pv & iv_use: req = max(req, 3)
                if ins.kind == 'vmem' and sca(p.defs) & sca(ins.uses): req = max(req, 5)
                if ins.kind in ('salu', 'smem') and sca(p.defs) & sca(ins.uses): req = max(req, 1)
            elif p.kind == 'salu':
                if ('m0', 0) in p.defs and ('m0', 0) in ins.uses and ins.kind in ('vmem', 'ds'): req = max(req, 1)
            elif p.kind == 'vmem':
                if ('store' in p.mn and ('x4' in p.mn or 'x3' in p.mn)) and (vec(p.uses) & iv_def): req = max(req, 2)
            need = max(need, req - dist)
            dist += p.ws
            if dist >= 24: break
        return need

    def _auto_wait(self, ins):
        touch = vec(ins.uses) | vec(ins.defs)
        nl = None
        for i, o in enumerate(self.lg):
            if o['defs'] & touch: nl = len(self.lg) - 1 - i
        nv = None
        for i, o in enumerate(self.vm):
            if o['defs'] & touch: nv = sum(1 for q in self.vm[i + 1:] if not q['maybe'])
        if self.smem & (ins.uses | ins.defs): nl = 0
        if nl is not None or nv is not None:
            self.wait(vm=nv, lg=nl)

    def wait(self, vm=None, lg=None):
        parts = []
        if vm is not None:
            vm = min(vm, 63)
            keep = []; n = 0
            for o in reversed(self.vm):
                if n < vm or (o['maybe'] and n <= vm and False):
                    keep.append(o)
                    if not o['maybe']: n += 1
                else:
                    break
            self.vm = list(reversed(keep))
            parts.append(f'vmcnt({vm})')
        if lg is not None:
            if self.smem: lg = 0
            lg = min(lg, 15)
            self.lg = self.lg[len(self.lg) - lg:] if lg else []
            if lg == 0: self.smem = set()
            parts.append(f'lgkmcnt({lg})')
        if parts:
            self._push(I('s_waitcnt ' + ' '.join(parts)))

    def wait_tag(self, tag, lg=None):
        idx = [i for i, o in enumerate(self.vm) if o['tag'] == tag or (isinstance(tag, (list, tuple, set)) and o['tag'] in tag)]
        if not idx:
            if lg is not None: self.wait(lg=lg)
            return
        n = sum(1 for q in self.vm[idx[-1] + 1:] if not q['maybe'])
        self.wait(vm=n, lg=lg)

    def e(self, text, tag=None, maybe=False):
        ins = text if isinstance(text, I) else I(text, tag)
        self._auto_wait(ins)
        if ins.kind == 'ds' and len(self.lg) >= 15:
            self.wait(lg=14)
        if ins.kind == 'vmem' and len(self.vm) >= 63:
            self.wait(vm=62)
        n = self._need_states(ins)
        if n > 0:
            self.nops += n
            while n > 0:
                k = min(n, 16)
                self._push(I(f's_nop {k-1}')); n -= k
        self._push(ins)
        if ins.kind == 'vmem':
            tg = ins.tag if ins.tag is not None else tag
            self.vm.append(dict(tag=tg, defs=vec(ins.defs), maybe=maybe))
            self.issued[tg] = self.issued.get(tg, 0) + 1
        elif ins.kind == 'ds':
            self.lg.append(dict(defs=vec(ins.defs)))
        elif ins.kind == 'smem':
            self.smem |= ins.defs
        return ins

    def m(self, text):
        for ln in text.strip('\n').split('\n'):
            ln = ln.strip()
            if not ln or ln.startswith(';'): continue
            if ln.endswith(':'): self.label(ln[:-1])
            else: self.e(ln)

    def fence(self):
        self._push(I('s_nop 15'))

    def text(self):
        return '\n'.join(self.out) + '\n'


class Act:
    def __init__(self, items, cost=None):
        self.items = items if isinstance(items, list) else [items]
        c = 0
        for it in self.items:
            if isinstance(it, str): c += I(it).cost
            elif isinstance(it, tuple): c += I(it[0]).cost
            else: c += 4
        self.cost = c if cost is None else cost
    def emit(self, a):
        for it in self.items:
            if isinstance(it, str): a.e(it)
            elif isinstance(it, tuple): a.e(it[0], tag=it[1])
            else: it(a)

def weave(a, mfmas, urgent, queues, budget=24, per_gap_urgent=3):
    urgent = list(urgent)
    for k, mf in enumerate(mfmas):
        if isinstance(mf, str): a.e(mf)
        else: mf.emit(a)
        left = budget
        n = 0
        remaining = len(mfmas) - k
        while urgent and (n < per_gap_urgent or remaining == 1):
            u = urgent.pop(0); u.emit(a); left -= u.cost; n += 1
        progress = True
        while progress:
            progress = False
            for q in queues:
                if q and q[0].cost <= left:
                    u = q.pop(0); u.emit(a); left -= u.cost; progress = True
                    break
    assert not urgent

def drain(a, q):
    while q:
        q.pop(0).emit(a)
```

```python
import sys, os
sys.path.insert(0, os.path.dirname(os.path.abspath(__file__)))
from asmlib import *

NAME = 'recurrent_scan__sliding_block__glu_gated_glu__prompt'

WS_EPOCH = 0
WS_FR, WS_FC, WS_FC2, WS_FKV = 0x1000, 0x1400, 0x1800, 0x1C00
WS_FH0A, WS_FH0B, WS_FH1, WS_FH2, WS_FO = 0x2000, 0x2400, 0x2800, 0x2C00, 0x3000
WS_RS = 0x4000
WS_CS = 0x8000
WS_KV = 0x100000
WS_O = 0x500000
WS_H = 0x800000
WS_DBG = 0x1000000
WS_SIZE = 0x1100000
OOB = 0x40000000

K = 1024
SLOT = [0, 48 * K, 96 * K]
def slot_of(s): return SLOT[(s + 1) % 3]
L_W1C0, L_W2C0, L_CS = 144 * K, 152 * K, 156 * K
L_K, L_V = 32 * K, 64 * K
VSTR = 1040
L_RST = 159 * K
CGRP = [100 * K + 8 * K * i for i in range(6)] + [148 * K] + [8 * K * i for i in range(4)] + \
       [64 * K + 8 * K * i for i in range(4)] + [32 * K + 8 * K * i for i in range(4)]
NG = len(CGRP)
LDS_BYTES = 160 * K

sX, sWa, sWb, sWS, sDN, sWL, sOUT, sWsel = 24, 28, 32, 36, 40, 44, 48, 96
sW, sR, sCol, sC, sTag, sChunk, sT0, sT1 = 52, 53, 54, 55, 56, 57, 58, 59
sXc = 60
sK27 = 68
sT2, sT3, sT4 = 69, 70, 71
sT, sFc, sIsQ, sM0X, sM0W, sF = 72, 73, 74, 75, 76, 77
sH0, sH1, sH2 = 78, 79, 80
sM0a, sM0b = 81, 82
sCnt = 83
sRing = 84
sSlot, sRc, sSafe = 92, 93, 94
def srd(n): return f's[{n}:{n+3}]'

LOG2E = 1.4426950408889634
import struct
def fbits(x): return '0x%08x' % struct.unpack('<I', struct.pack('<f', x))[0]

def vr(b, n): return f'v[{b}:{b+n-1}]'
def ar(b, n): return f'a[{b}:{b+n-1}]'
def mfma(d, a_, b_, c): return f'v_mfma_f32_32x32x16_bf16 {d}, {a_}, {b_}, {c}'

def seq(text):
    acts, cur = [], []
    for ln in text.strip().split('\n'):
        ln = ln.strip()
        if not ln: continue
        cur.append(ln)
        if not ln.startswith('s_') :
            acts.append(cur); cur = []
    if cur: acts.append(cur)
    return [Act(c, cost=min(24, 4 * len(c))) for c in acts]

class Gen:
    def __init__(self, opt):
        self.opt = opt
        self.a = Asm()
        self.slow = []
        self.nlab = 0

    def stamp(self, idx):
        if not self.opt.get('stamps'): return
        a = self.a
        a.e('s_memrealtime s[100:101]')
        a.e('s_memtime s[10:11]')
        a.wait(lg=0)
        a.e(f'v_mov_b32 v31, s100')
        a.e(f's_mov_b32 s{sCnt}, {WS_DBG + idx * 4}')
        a.e(f'buffer_store_dword v31, v30, {srd(sWS)}, s{sCnt} offen', tag='stamp')
        a.e(f'v_mov_b32 v31, s10')
        a.e(f'buffer_store_dword v31, v30, {srd(sWS)}, s{sCnt} offen offset:64', tag='stamp')

    def poll_issue(self, vaddr, vdst, soff=None):
        so = f's{soff}' if soff is not None else '0'
        return Act((f'buffer_load_dword v{vdst}, v{vaddr}, {srd(sWS)}, {so} offen sc1', 'poll'))

    def poll_check(self, vaddr, vdst, soff=None):
        self.nlab += 1
        n = self.nlab
        so = f's{soff}' if soff is not None else '0'
        self.slow.append(f'''L_slow{n}:
  s_mov_b32 s{sCnt}, 0x40000
L_spin{n}:
  buffer_load_dword v{vdst}, v{vaddr}, {srd(sWS)}, {so} offen sc1
  s_waitcnt vmcnt(0)
  v_cmp_ne_u32 vcc, s{sTag}, v{vdst}
  s_cbranch_vccz L_back{n}
  s_sub_u32 s{sCnt}, s{sCnt}, 1
  s_cmp_lg_u32 s{sCnt}, 0
  s_cbranch_scc1 L_spin{n}
  s_branch L_back{n}
''')
        def f(a):
            a.e(f'v_cmp_ne_u32 vcc, s{sTag}, v{vdst}')
            a.e(f's_cbranch_vccnz L_slow{n}')
            a.label(f'L_back{n}')
        return Act(f, cost=12)

    def flag_store(self, base):
        return Act([f's_mov_b32 s{sT4}, {base}',
                    (f'buffer_store_dword v{self.vTag}, v{self.vFlag}, {srd(sWS)}, s{sT4} offen sc1', 'flag')])

    EXPECT = {'h0a': 4, 'h0b': 4, 'h1': 4, 'h2': 2, 'kv': 8, 'o': 4, 'csd': 1, 'csd2': 1, 'rsl': 2, 'rs': 1}
    def expect(self, tags):
        for t in tags:
            n = self.EXPECT.get(t)
            if t.startswith('cw'): n = 2
            if t.startswith('w12_'): n = 3
            if t[0] == 'd' and t[1:].isdigit(): n = self.ndma
            if t == 'csst': n = self.ncs
            assert n is not None, t
            got = self.a.issued.get(t, 0)
            assert got == n, (t, got, n)
    def barrier(self, tags=None, lg=None, after=None):
        def f(a):
            if tags is not None:
                self.expect(tags)
                a.wait_tag(tags, lg=lg)
            elif lg is not None: a.wait(lg=lg)
            a.e('s_barrier')
            if after: after()
        return Act(f, cost=12)

    def entry(self):
        a = self.a
        if self.opt.get('stamps'): a.e('s_memrealtime s[94:95]')
        a.m(f'''
        s_cmp_ge_u32 s2, 256
        s_cbranch_scc1 L_exit
        s_load_dwordx16 s[4:19], s[0:1], 0
        s_load_dwordx4 s[20:23], s[0:1], 64
        v_lshrrev_b32 v1, 6, v0
        v_and_b32 v2, 63, v0
        s_lshr_b32 s{sSlot}, s2, 3
        v_readfirstlane_b32 s{sW}, v1
        s_bfe_u32 s{sT0}, s2, 0x10002
        s_and_b32 s{sT1}, s2, 3
        s_and_b32 s{sT2}, s{sSlot}, 3
        s_lshl_b32 s{sR}, s{sT0}, 2
        s_add_u32 s{sRc}, s{sR}, s{sT1}
        s_add_u32 s{sR}, s{sR}, s{sT2}
        s_lshr_b32 s{sIsQ}, s{sSlot}, 4
        s_bfe_u32 s{sT3}, s{sSlot}, 0x20002
        s_lshl_b32 s{sCol}, s{sT1}, 2
        s_add_u32 s{sCol}, s{sCol}, s{sT3}
        s_lshl_b32 s{sC}, s{sIsQ}, 4
        s_add_u32 s{sC}, s{sC}, s{sCol}
        s_add_u32 s{sF}, s{sT2}, s{sT3}
        s_lshl_b32 s{sF}, s{sF}, 1
        s_xor_b32 s{sT0}, s{sT0}, s{sIsQ}
        s_add_u32 s{sF}, s{sF}, s{sT0}
        s_and_b32 s{sF}, s{sF}, 7
        s_mov_b32 s{sChunk}, s{sF}
        ''')
        a.m(f'''
        v_lshrrev_b32 v3, 3, v2
        v_and_b32 v4, 7, v2
        v_lshrrev_b32 v9, 1, v3
        v_xor_b32 v9, v9, v4
        v_lshlrev_b32 v9, 4, v9
        v_lshl_add_u32 v5, v3, 10, v9
        v_xor_b32 v6, 64, v5
        s_lshl_b32 s{sT0}, s{sChunk}, 7
        v_add_u32 v7, s{sT0}, v5
        v_add_u32 v8, s{sT0}, v6
        s_lshl_b32 s{sT0}, s{sR}, 3
        s_add_u32 s{sT1}, s{sT0}, s{sW}
        s_lshl_b32 s{sXc}, s{sT1}, 15
        s_sub_u32 s{sT1}, s{sT0}, s{sW}
        s_add_u32 s{sT1}, s{sT1}, 7
        s_lshl_b32 s{sXc+4}, s{sT1}, 15
        s_add_u32 s{sXc+1}, s{sXc}, 7168
        s_add_u32 s{sXc+2}, s{sXc}, 14336
        s_add_u32 s{sXc+3}, s{sXc}, 21504
        s_add_u32 s{sXc+5}, s{sXc+4}, 7168
        s_add_u32 s{sXc+6}, s{sXc+4}, 14336
        s_add_u32 s{sXc+7}, s{sXc+4}, 21504
        s_lshl_b32 s{sM0X}, s{sW}, 13
        ''')
        a.m(f'''
        s_lshl_b32 s{sT0}, s{sR}, 7
        s_lshl_b32 s{sT1}, s{sC}, 2
        s_add_u32 s{sT0}, s{sT0}, s{sT1}
        s_add_u32 s{sT0}, s{sT0}, s{sW}
        s_lshl_b32 s{sT1}, s{sT0}, 11
        v_lshl_add_u32 v10, v2, 4, s{sT1}
        v_mov_b32 v11, 0
        s_mov_b32 s{sX+2}, 0x200000
        s_mov_b32 s{sX+3}, 0x20000
        s_mov_b32 s{sWS+2}, {WS_SIZE}
        s_mov_b32 s{sWS+3}, 0x20000
        s_mov_b32 s{sWa+3}, 0x20000
        s_mov_b32 s{sWb+3}, 0x20000
        s_mov_b32 s{sWb+2}, 1835008
        ''')
        a.e(f's_lshl_b32 s{sH2}, s{sT0}, 4')
        a.e(f's_cmp_eq_u32 s{sIsQ}, 0')
        a.wait(lg=0)
        if self.opt.get('stamps'): a.e('s_mov_b32 s95, s94')
        a.m(f'''
        s_mov_b32 s{sX}, s4
        s_mov_b32 s{sX+1}, s5
        s_mov_b32 s{sWS}, s22
        s_mov_b32 s{sWS+1}, s23
        s_mov_b32 s{sWb}, s14
        s_mov_b32 s{sWb+1}, s15
        ''')
        a.e(f'buffer_load_dword v12, v11, {srd(sWS)}, 0 offen sc1', tag='epoch')
        a.e(f'buffer_load_dwordx4 v[16:19], v10, {srd(sX)}, 0 offen', tag='st')
        a.e(f'buffer_load_dwordx4 v[20:23], v10, {srd(sX)}, 0 offen offset:1024', tag='st')
        a.e('s_cbranch_scc0 L_qrole')

    def x_dma(self, s):
        acts = []
        for i in range(8):
            tbl, q = i >> 2, i & 3
            it = []
            if q == 0: it.append(f's_add_u32 m0, s{sM0X}, {slot_of(s) + tbl * 4096}')
            it.append((f'buffer_load_dwordx4 v{7 + (q & 1)}, {srd(sX)}, s{sXc + i} offen offset:{1024 * q} lds', f'd{s}'))
            acts.append(Act(it))
        return acts

    def next_chunk(self, wstride, wregs):
        acts = [Act([f's_add_u32 s{sChunk}, s{sChunk}, 1', f's_and_b32 s{sChunk}, s{sChunk}, 7']),
                Act([f's_lshl_b32 s{sT0}, s{sChunk}, 7', f'v_add_u32 v7, s{sT0}, v5', f'v_add_u32 v8, s{sT0}, v6']),
                Act([f's_mul_i32 s{sT0}, s{sChunk}, {64 * wstride}'] + [f'v_add_u32 v{l}, s{sT0}, v{b}' for l, b in wregs])]
        return acts

    def code_prefetch(self, vt):
        a = self.a
        if self.opt.get('noprefetch'): return
        a.m(f'''
        s_getpc_b64 s[100:101]
        ''')
        self.nlab += 1
        n = self.nlab
        a.label(f'L_pc{n}')
        a.m(f'''
        s_sub_u32 s100, s100, L_pc{n}-{NAME}_kernel
        s_subb_u32 s101, s101, 0
        v_min_u32 v{vt}, 23, v0
        s_mul_i32 s{sT0}, s{sSlot}, 24
        v_add_u32 v{vt}, s{sT0}, v{vt}
        v_lshlrev_b32 v{vt}, 7, v{vt}
        v_min_u32 v{vt}, L_codeend-{NAME}_kernel-4, v{vt}
        ''')
        a.e(f'global_load_dword v159, v{vt}, s[100:101]', tag='pf')

    def row_stats(self):
        a = self.a
        A, B = 32, 40
        for row, (src, dst) in enumerate(((16, A), (20, B))):
            for i in range(4):
                a.e(f'v_lshlrev_b32 v{dst + 2 * i}, 16, v{src + i}')
                a.e(f'v_and_b32 v{dst + 2 * i + 1}, 0xffff0000, v{src + i}')
        def tree(dst, srcs):
            a.e(f'v_add_f32 v{dst}, v{srcs[0]}, v{srcs[1]}')
            for s_ in srcs[2:]: a.e(f'v_add_f32 v{dst}, v{dst}, v{s_}')
        def allreduce(r0, r1, t0, t1):
            for ctl in ('quad_perm:[1,0,3,2]', 'quad_perm:[2,3,0,1]', 'row_half_mirror', 'row_mirror'):
                a.e(f'v_add_f32_dpp v{r0}, v{r0}, v{r0} {ctl} row_mask:0xf bank_mask:0xf')
                a.e(f'v_add_f32_dpp v{r1}, v{r1}, v{r1} {ctl} row_mask:0xf bank_mask:0xf')
            for sw in ('v_permlane16_swap_b32', 'v_permlane32_swap_b32'):
                a.e(f'v_mov_b32 v{t0}, v{r0}')
                a.e(f'v_mov_b32 v{t1}, v{r1}')
                a.e(f'{sw} v{r0}, v{t0}')
                a.e(f'{sw} v{r1}, v{t1}')
                a.e(f'v_add_f32 v{r0}, v{r0}, v{t0}')
                a.e(f'v_add_f32 v{r1}, v{r1}, v{t1}')
        tree(48, list(range(A, A + 8))); tree(49, list(range(B, B + 8)))
        allreduce(48, 49, 50, 51)
        a.e(f'v_mul_f32 v48, {fbits(1 / 512)}, v48')
        a.e(f'v_mul_f32 v49, {fbits(1 / 512)}, v49')
        for i in range(8):
            a.e(f'v_sub_f32 v{A + i}, v{A + i}, v48')
            a.e(f'v_sub_f32 v{B + i}, v{B + i}, v49')
        a.e(f'v_mul_f32 v52, v{A}, v{A}')
        a.e(f'v_mul_f32 v53, v{B}, v{B}')
        for i in range(1, 8):
            a.e(f'v_fmac_f32 v52, v{A + i}, v{A + i}')
            a.e(f'v_fmac_f32 v53, v{B + i}, v{B + i}')
        allreduce(52, 53, 50, 51)
        a.m(f'''
        v_mul_f32 v52, {fbits(1 / 512)}, v52
        v_mul_f32 v53, {fbits(1 / 512)}, v53
        v_cvt_pk_bf16_f32 v54, v52, v53
        v_cvt_pk_bf16_f32 v56, -v48, -v48
        v_cvt_pk_bf16_f32 v58, -v49, -v49
        v_lshlrev_b32 v52, 16, v54
        v_and_b32 v53, 0xffff0000, v54
        v_add_f32 v52, {fbits(1e-5)}, v52
        v_add_f32 v53, {fbits(1e-5)}, v53
        v_cvt_pk_bf16_f32 v54, v52, v53
        v_lshlrev_b32 v52, 16, v54
        v_and_b32 v53, 0xffff0000, v54
        v_sqrt_f32 v52, v52
        v_sqrt_f32 v53, v53
        v_cmp_eq_u32 vcc, 0, v2
        v_cvt_pk_bf16_f32 v54, v52, v53
        v_mov_b32 v50, {OOB}
        v_mov_b32 v51, s{sH2}
        v_lshlrev_b32 v57, 16, v54
        v_and_b32 v59, 0xffff0000, v54
        v_cndmask_b32 v50, v50, v51, vcc
        s_mov_b32 s{sT4}, {WS_RS}
        ''')
        a.e(f'buffer_store_dwordx4 v[56:59], v50, {srd(sWS)}, s{sT4} offen sc1', tag='rs')

    def tag_setup(self):
        a = self.a
        a.m(f'''
        v_readfirstlane_b32 s{sTag}, v12
        s_lshl_b32 s{sT0}, s{sR}, 5
        s_add_u32 s{sT0}, s{sT0}, s{sC}
        s_lshl_b32 s{sT0}, s{sT0}, 2
        s_mul_i32 s{sTag}, s{sTag}, 1664525
        s_add_u32 s{sTag}, s{sTag}, 1013904223
        v_cmp_eq_u32 vcc, 0, v0
        v_mov_b32 v{self.vFlag}, {OOB}
        v_mov_b32 v{self.vTag}, s{sT0}
        v_cndmask_b32 v{self.vFlag}, v{self.vFlag}, v{self.vTag}, vcc
        v_mov_b32 v{self.vTag}, s{sTag}
        ''')
        if self.opt.get('stamps'):
            a.m(f'''
            s_lshl_b32 s{sT0}, s2, 7
            v_mov_b32 v30, {OOB}
            v_mov_b32 v31, s{sT0}
            v_cndmask_b32 v30, v30, v31, vcc
            v_mov_b32 v31, s95
            s_mov_b32 s{sCnt}, {WS_DBG + 12 * 4}
            ''')
            a.e(f'buffer_store_dword v31, v30, {srd(sWS)}, s{sCnt} offen', tag='stamp')

    def stat_poll_addr(self, vd, t0, t1):
        a = self.a
        a.m(f'''
        s_lshl_b32 s{sT0}, s{sR}, 7
        s_add_u32 s{sT0}, s{sT0}, {WS_FR}
        v_lshl_add_u32 v{t0}, v2, 2, s{sT0}
        s_lshl_b32 s{sT0}, s{sC}, 2
        s_add_u32 s{sT0}, s{sT0}, {WS_FC}
        v_and_b32 v{t1}, 7, v2
        v_lshl_add_u32 v{t1}, v{t1}, 7, s{sT0}
        v_cmp_gt_u32 vcc, 32, v2
        s_nop 1
        v_cndmask_b32 v{vd}, v{t1}, v{t0}, vcc
        ''')

    def xread_addr(self, base, s0):
        a = self.a
        a.m(f'''
        v_and_b32 v32, 31, v2
        v_bfe_u32 v33, v2, 1, 3
        v_lshrrev_b32 v34, 5, v2
        v_xor_b32 v33, v33, v34
        s_add_u32 s{sT0}, s{sM0X}, {s0}
        v_lshl_add_u32 v32, v32, 7, s{sT0}
        ''')
        for ks in range(4):
            a.e(f'v_xor_b32 v34, {2 * ks}, v33')
            a.e(f'v_lshl_add_u32 v{base + ks}, v34, 4, v32')

    def cs_pack_store(self, acc, vaddr, t):
        return [Act(f'v_and_b32 v{t}, 0xffff0000, v{acc}'),
                Act(f'v_sub_f32 v{acc}, v{acc}, v{t}'),
                Act(f'v_cvt_pk_bf16_f32 v{t}, v{t}, v{acc}'),
                Act((f'buffer_store_dword v{t}, v{vaddr}, {srd(sWS)}, 0 offen sc1', 'csst'))]

    def rs_loads(self, vRS):
        return [Act((f'buffer_load_dwordx2 v[{vRS}:{vRS+1}], v{vRS+4}, {srd(sWS)}, 0 offen sc1', 'rsl')),
                Act((f'buffer_load_dwordx2 v[{vRS+2}:{vRS+3}], v{vRS+5}, {srd(sWS)}, 0 offen sc1', 'rsl'))]

    def rs_addr(self, vRS, t):
        a = self.a
        a.m(f'''
        v_and_b32 v{t}, 31, v2
        s_lshr_b32 s{sT0}, s{sXc}, 7
        s_add_u32 s{sT0}, s{sT0}, {WS_RS}
        v_lshl_add_u32 v{vRS+4}, v{t}, 3, s{sT0}
        s_lshr_b32 s{sT0}, s{sXc+4}, 7
        s_add_u32 s{sT0}, s{sT0}, {WS_RS}
        v_lshl_add_u32 v{vRS+5}, v{t}, 3, s{sT0}
        ''')

    def c_setup(self, vTabH, vTabH2, vTabW, t):
        a = self.a
        a.m(f'''
        s_lshl_b32 s{sT}, s{sRc}, 2
        s_and_b32 s{sT0}, s{sSlot}, 3
        s_add_u32 s{sT}, s{sT}, s{sT0}
        s_lshr_b32 s{sFc}, s{sSlot}, 2
        s_lshl_b32 s{sT0}, s{sT0}, 1
        s_add_u32 s{sT0}, s{sT0}, s{sFc}
        s_lshl_b32 s{sT0}, s{sT0}, 1
        s_lshr_b32 s{sT1}, s{sW}, 1
        s_and_b32 s{sT2}, s{sW}, 1
        ''')
        def unit(vstep, vout):
            g, x, y, z = t, t + 1, t + 2, t + 3
            a.m(f'''
            v_add_u32 v{g}, s{sT0}, v{vstep}
            v_and_b32 v{g}, 15, v{g}
            v_lshrrev_b32 v{x}, 2, v{g}
            v_mul_u32_u24 v{x}, 28, v{x}
            v_and_b32 v{y}, 3, v{g}
            v_lshl_add_u32 v{vout}, v{y}, 3, v{x}
            v_add_u32 v{vout}, s{sT1}, v{vout}
            v_bfe_u32 v{z}, v{vstep}, 4, 1
            v_lshl_add_u32 v{vout}, v{z}, 1, v{vout}
            ''')
            a.m(f'''
            v_cmp_le_u32 vcc, 48, v{vstep}
            v_add_u32 v{z}, 8, v{g}
            v_and_b32 v{z}, 15, v{z}
            v_cndmask_b32 v{z}, v{g}, v{z}, vcc
            v_mov_b32 v{y}, s{sT1}
            v_cndmask_b32 v{y}, v{y}, 0, vcc
            v_lshrrev_b32 v{x}, 2, v{z}
            v_mul_u32_u24 v{x}, 28, v{x}
            v_add_u32 v{y}, v{y}, v{x}
            v_and_b32 v{x}, 1, v{z}
            v_lshl_add_u32 v{y}, v{x}, 3, v{y}
            v_bfe_u32 v{x}, v{z}, 1, 1
            v_mul_u32_u24 v{x}, 10, v{x}
            v_add3_u32 v{y}, v{y}, v{x}, 4
            v_cmp_le_u32 vcc, 32, v{vstep}
            s_nop 1
            v_cndmask_b32 v{vout}, v{vout}, v{y}, vcc
            ''')
            a.m(f'''
            v_lshrrev_b32 v{x}, 2, v{z}
            v_mul_u32_u24 v{x}, 28, v{x}
            v_and_b32 v{y}, 1, v{z}
            v_add3_u32 v{y}, v{y}, v{x}, 6
            v_bfe_u32 v{x}, v{z}, 1, 1
            v_mul_u32_u24 v{x}, 14, v{x}
            v_add_u32 v{y}, v{y}, v{x}
            v_cmp_le_u32 vcc, 56, v{vstep}
            s_nop 1
            v_cndmask_b32 v{vout}, v{vout}, v{y}, vcc
            ''')
            a.m(f'''
            s_lshl_b32 s{sT3}, s{sT0}, 1
            v_add_u32 v{x}, s{sT3}, v{vstep}
            v_and_b32 v{x}, 31, v{x}
            v_or_b32 v{x}, 0x1000, v{x}
            s_cmp_eq_u32 s{sT1}, 0
            s_cselect_b32 s{sT3}, 40, 0x100
            v_cmp_le_u32 vcc, s{sT3}, v{vstep}
            s_nop 1
            v_cndmask_b32 v{vout}, v{vout}, v{x}, vcc
            ''')
        st = t + 4
        def to_h(vu):
            x = t
            a.m(f'''
            s_lshl_b32 s{sT3}, s{sT}, 1
            s_add_u32 s{sT3}, s{sT3}, s{sT2}
            s_mul_i32 s{sT4}, s{sT3}, 112
            s_add_u32 s{sT4}, s{sT4}, {WS_H >> 10}
            s_lshl_b32 s{sT3}, s{sT3}, 5
            s_add_u32 s{sT3}, s{sT3}, {(WS_O >> 10) - 0x1000 + (1 << 32) if (WS_O >> 10) < 0x1000 else (WS_O >> 10) - 0x1000}
            v_cmp_le_u32 vcc, 0x1000, v{vu}
            v_mov_b32 v{x}, s{sT4}
            v_mov_b32 v{x+1}, s{sT3}
            v_cndmask_b32 v{x}, v{x}, v{x+1}, vcc
            v_add_u32 v{vu}, v{vu}, v{x}
            v_lshlrev_b32 v{vu}, 10, v{vu}
            ''')
        a.e(f'v_mov_b32 v{st}, v2'); unit(st, vTabH); to_h(vTabH)
        a.e(f'v_add_u32 v{st}, 64, v2'); unit(st, vTabH2); to_h(vTabH2)
        a.e(f'v_lshl_add_u32 v{st}, v2, 1, s{sT2}'); unit(st, vTabW)
        a.m(f'''
        v_and_b32 v{vTabW}, 0xfff, v{vTabW}
        v_lshlrev_b32 v{vTabW}, 14, v{vTabW}
        s_mov_b32 s{sDN}, s16
        s_mov_b32 s{sDN+1}, s17
        s_mov_b32 s{sDN+2}, 1835008
        s_mov_b32 s{sDN+3}, 0x20000
        s_cmp_eq_u32 s{sT1}, 0
        s_cselect_b32 s{sWL}, s8, s16
        s_cselect_b32 s{sWL+1}, s9, s17
        s_mov_b32 s{sWL+2}, 524288
        s_cselect_b32 s{sWL+2}, s{sWL+2}, s{sDN+2}
        s_mov_b32 s{sWL+3}, 0x20000
        s_mov_b32 s{sOUT}, s18
        s_mov_b32 s{sOUT+1}, s19
        s_mov_b32 s{sOUT+2}, 0x200000
        s_mov_b32 s{sOUT+3}, 0x20000
        ''')

    def c_addr_setup(self):
        vCW, vCr, vCh, vCp = self.vCW, self.vCr, self.vCh, self.vCp
        t = self.vCt
        return seq(f'''
        v_lshrrev_b32 v{t}, 3, v2
        v_and_b32 v{t+1}, 7, v2
        v_bfe_u32 v{vCW}, v2, 4, 1
        v_lshlrev_b32 v{vCW}, 2, v{vCW}
        v_xor_b32 v{vCW}, v{vCW}, v{t+1}
        v_lshlrev_b32 v{vCW}, 4, v{vCW}
        v_lshl_add_u32 v{vCW}, v{t}, 10, v{vCW}
        s_lshl_b32 s{sT0}, s{sFc}, 7
        v_add_u32 v{vCW}, s{sT0}, v{vCW}
        v_add_u32 v{vCW+1}, 7168, v{vCW}
        v_lshlrev_b32 v{vCh}, 4, v2
        v_bfe_u32 v{t}, v2, 2, 2
        v_lshrrev_b32 v{t+1}, 5, v2
        v_lshl_add_u32 v{t}, v{t+1}, 2, v{t}
        v_lshlrev_b32 v{vCr}, 7, v{t}
        v_bfe_u32 v{t}, v2, 3, 1
        v_lshl_add_u32 v{vCr}, v{t}, 6, v{vCr}
        v_bfe_u32 v{t}, v2, 4, 1
        v_lshl_add_u32 v{vCr}, v{t}, 5, v{vCr}
        v_and_b32 v{t}, 3, v2
        v_lshl_add_u32 v{vCr}, v{t}, 3, v{vCr}
        s_lshr_b32 s{sT0}, s{sW}, 1
        s_lshl_b32 s{sT0}, s{sT0}, 12
        v_add_u32 v{vCr}, s{sT0}, v{vCr}
        v_xor_b32 v{vCr+1}, 64, v{vCr}
        v_and_b32 v{t}, 15, v2
        s_lshl_b32 s{sT0}, s{sRc}, 7
        v_lshl_add_u32 v{vCp}, v{t}, 2, s{sT0}
        s_lshl_b32 s{sM0a}, s{sW}, 11
        ''')

    def c_wdma(self, g):
        sr = sRing + (g % 4)
        srd_ = srd(sDN) if g < 20 else srd(sWL)
        base = CGRP[g % NG]
        return [Act([f'v_readlane_b32 s{sr}, v{self.vTabW}, {g}', f's_add_u32 m0, s{sM0a}, {base}']),
                Act('s_nop 3', cost=8),
                Act((f'buffer_load_dwordx4 v{self.vCW}, {srd_}, s{sr} offen lds', f'cw{g}')),
                Act((f'buffer_load_dwordx4 v{self.vCW+1}, {srd_}, s{sr} offen offset:1024 lds', f'cw{g}'))]

    def c_hload(self, s):
        def rl(x):
            tab = f'v{self.vTabH}, {x}' if x < 64 else f'v{self.vTabH2}, {x - 64}'
            return Act(f'v_readlane_b32 s{sRing + 4 + (x % 4)}, {tab}')
        r = [rl(0), rl(1)] if s == 0 else []
        if s + 2 < 72: r.append(rl(s + 2))
        r.append(Act((f'buffer_load_dwordx4 {self.ring(s)}, v{self.vCh}, {srd(sWS)}, s{sRing + 4 + (s % 4)} offen sc1', f'hf{s}')))
        return r

    def c_poll(self, baseA, baseB):
        sp = sT3
        def issue():
            return [Act([f's_cmp_lt_u32 s{sW}, 2', f's_mov_b32 s{sM0b}, {baseB}', f's_cselect_b32 s{sM0b}, {baseA}, s{sM0b}']),
                    self.poll_issue(self.vCp, self.vCp + 1, sM0b)]
        return issue(), self.poll_check(self.vCp, self.vCp + 1, sM0b)

    def g_role(self):
        a = self.a
        opt = self.opt
        self.vTag, self.vFlag = 13, 14
        self.ndma, self.ncs = 12, 1
        vWl, vWb_ = 24, 26
        vXr, vWr = 16, 20
        vCSr, vOnes = 15, 60
        WF = 32
        ACC0, ACC1, ACC2 = 128, 64, 128
        a.m(f'''
        s_mov_b32 s{sWa}, s12
        s_mov_b32 s{sWa+1}, s13
        s_mov_b32 s{sWa+2}, 1835008
        s_lshr_b32 s{sT0}, s{sCol}, 2
        s_mul_i32 s{sT0}, s{sT0}, 7
        s_and_b32 s{sT1}, s{sCol}, 3
        s_lshl_b32 s{sT2}, s{sT1}, 1
        s_add_u32 s{sH0}, s{sT0}, s{sT2}
        s_lshl_b32 s{sT2}, s{sH0}, 7
        s_mul_i32 s{sT3}, s{sW}, {16 * 3584}
        s_add_u32 s{sT2}, s{sT2}, s{sT3}
        v_bfe_u32 v9, v2, 4, 1
        v_lshlrev_b32 v9, 1, v9
        v_xor_b32 v9, v9, v4
        v_lshl_add_u32 v9, v9, 4, s{sT2}
        v_mul_u32_u24 v{vWb_}, 3584, v3
        v_add_u32 v{vWb_}, v{vWb_}, v9
        v_xor_b32 v{vWb_+1}, 64, v{vWb_}
        s_mul_i32 s{sT2}, s{sChunk}, {64 * 3584}
        v_add_u32 v{vWl}, s{sT2}, v{vWb_}
        v_add_u32 v{vWl+1}, s{sT2}, v{vWb_+1}
        s_mov_b32 s{sK27}, {8 * 3584 - 1024}
        s_lshl_b32 s{sM0W}, s{sW}, 11
        ''')
        def w_dma(s):
            acts = []
            for mat in range(2):
                for jj in range(2):
                    it = []
                    if jj == 0: it.append(f's_add_u32 m0, s{sM0W}, {slot_of(s) + 32768 + mat * 8192}')
                    so = f's{sK27}' if jj else '0'
                    it.append((f'buffer_load_dwordx4 v{vWl + mat}, {srd(sWb if mat else sWa)}, {so} offen offset:{1024 * jj} lds', f'd{s}'))
                    acts.append(Act(it))
            return acts
        def stage_dma(s):
            return w_dma(s) + self.x_dma(s) + self.next_chunk(3584, [(vWl, vWb_), (vWl + 1, vWb_ + 1)])
        drain(a, stage_dma(0))
        self.code_prefetch(9)
        a.m(f'''
        s_lshr_b32 s{sT0}, s{sCol}, 2
        s_mul_i32 s{sT0}, s{sT0}, 28
        s_and_b32 s{sT1}, s{sCol}, 1
        s_bfe_u32 s{sT2}, s{sCol}, 0x10001
        s_lshl_b32 s{sT3}, s{sT1}, 3
        s_add_u32 s{sH1}, s{sT0}, s{sT3}
        s_mul_i32 s{sT3}, s{sT2}, 10
        s_add_u32 s{sH1}, s{sH1}, s{sT3}
        s_add_u32 s{sH1}, s{sH1}, 4
        s_mul_i32 s{sT3}, s{sT2}, 14
        s_add_u32 s{sT3}, s{sT3}, s{sT0}
        s_add_u32 s{sT3}, s{sT3}, s{sT1}
        s_add_u32 s{sSafe}, s{sT3}, 6
        s_lshl_b32 s{sH0}, s{sH0}, 2
        ''')
        vW1, vW2 = 28, 11
        a.m(f'''
        v_lshrrev_b32 v32, 2, v2
        v_mul_u32_u24 v32, 3584, v32
        v_and_b32 v33, 3, v2
        s_mul_i32 s{sT0}, s{sW}, {16 * 3584}
        s_lshl_b32 s{sT1}, s{sH1}, 5
        s_add_u32 s{sT0}, s{sT0}, s{sT1}
        v_lshl_add_u32 v33, v33, 4, s{sT0}
        v_add_u32 v{vW1}, v32, v33
        v_xor_b32 v33, 32, v33
        v_add_u32 v{vW1+1}, v32, v33
        s_and_b32 s{sT0}, s{sW}, 1
        s_cselect_b32 s{sWsel}, s14, s12
        s_cselect_b32 s{sWsel+1}, s15, s13
        s_mov_b32 s{sWsel+2}, 1835008
        s_mov_b32 s{sWsel+3}, 0x20000
        s_lshl_b32 s{sT1}, s{sT0}, 2
        v_lshrrev_b32 v32, 1, v2
        v_xor_b32 v32, s{sT1}, v32
        v_mul_u32_u24 v32, 3584, v32
        s_lshr_b32 s{sT1}, s{sW}, 1
        s_mul_i32 s{sT2}, s{sT1}, {32 * 3584}
        s_lshl_b32 s{sT3}, s{sSafe}, 5
        s_add_u32 s{sT2}, s{sT2}, s{sT3}
        v_and_b32 v33, 1, v2
        v_lshl_add_u32 v33, v33, 4, s{sT2}
        v_add_u32 v{vW2}, v32, v33
        s_lshl_b32 s{sT1}, s{sT1}, 11
        s_lshl_b32 s{sT0}, s{sT0}, 10
        s_add_u32 s{sM0b}, s{sT0}, s{sT1}
        ''')
        def w12_dma(q):
            r1 = L_W1C0 if q == 0 else (q * 8192 if q < 4 else 64 * K + (q - 4) * 8192)
            r2 = L_W2C0 if q == 0 else 32 * K + q * 4096
            tg = f'w12_{q}'
            return [Act([f's_add_u32 s{sT1}, s{sF}, {q}', f's_and_b32 s{sT1}, s{sT1}, 7', f's_mul_i32 s{sT1}, s{sT1}, {64 * 3584}']),
                    Act([f's_add_u32 m0, s{sM0W}, {r1}', 's_nop 0', (f'buffer_load_dwordx4 v{vW1}, {srd(sWa)}, s{sT1} offen lds', tg)]),
                    Act([f's_add_u32 m0, s{sM0W}, {r1 + 1024}', 's_nop 0', (f'buffer_load_dwordx4 v{vW1+1}, {srd(sWb)}, s{sT1} offen lds', tg)]),
                    Act([f's_add_u32 m0, s{sM0b}, {r2}', 's_nop 0', (f'buffer_load_dwordx4 v{vW2}, {srd(sWsel)}, s{sT1} offen lds', tg)])]
        self.row_stats()
        drain(a, stage_dma(1)); drain(a, stage_dma(2)); drain(a, w12_dma(0))
        self.tag_setup()
        self.stamp(0)
        vTabH, vTabH2, vTabW = 3, 4, 9
        self.vTabH, self.vTabH2, self.vTabW = vTabH, vTabH2, vTabW
        self.c_setup(vTabH, vTabH2, vTabW, 32)
        self.xread_addr(vXr, slot_of(0))
        a.m(f'''
        v_bfe_u32 v32, v2, 4, 1
        v_bfe_u32 v33, v2, 2, 2
        v_lshrrev_b32 v34, 5, v2
        v_lshl_add_u32 v34, v34, 3, v33
        v_lshlrev_b32 v34, 7, v34
        v_lshl_add_u32 v34, v32, 13, v34
        v_and_b32 v35, 1, v2
        v_lshl_add_u32 v34, v35, 3, v34
        v_add_u32 v34, {slot_of(0) + 32768}, v34
        v_bfe_u32 v35, v2, 1, 1
        v_and_b32 v33, 2, v33
        v_or_b32 v35, v35, v33
        v_lshl_or_b32 v35, v32, 2, v35
        ''')
        for v in range(4):
            a.e(f'v_xor_b32 v36, {2 * v}, v35')
            a.e(f'v_lshl_add_u32 v{vWr + v}, v36, 4, v34')
        vCSacc, vCSf, vOnes, vCSst, vPoll, vRS, vB2 = 64, 80, 84, 88, 90, 92, 100
        a.m(f'''
        s_lshl_b32 s{sT0}, s{sW}, 1
        v_xor_b32 v36, s{sT0}, v35
        v_lshl_add_u32 v{vCSr}, v36, 4, v34
        v_mov_b32 v{vOnes}, 0x3f803f80
        v_mov_b32 v{vOnes+1}, 0x3f803f80
        v_mov_b32 v{vOnes+2}, 0x3f803f80
        v_mov_b32 v{vOnes+3}, 0x3f803f80
        v_and_b32 v36, 31, v2
        s_add_u32 s{sT0}, s{sH0}, s{sW}
        s_lshl_b32 s{sT0}, s{sT0}, 10
        s_lshl_b32 s{sT1}, s{sR}, 7
        s_add_u32 s{sT1}, s{sT1}, {WS_CS}
        s_add_u32 s{sT0}, s{sT0}, s{sT1}
        v_lshl_add_u32 v{vCSst}, v36, 2, s{sT0}
        s_add_u32 s{sT0}, s{sH1}, s{sW}
        s_cmp_lt_u32 s{sW}, 2
        s_cselect_b32 s{sT0}, s{sT0}, s{sSafe}
        s_lshl_b32 s{sT0}, s{sT0}, 10
        s_add_u32 s{sT0}, s{sT0}, s{sT1}
        s_cmp_eq_u32 s{sW}, 3
        s_cselect_b32 s{sT0}, {OOB}, s{sT0}
        v_lshl_add_u32 v{vCSst+1}, v36, 2, s{sT0}
        ''')
        self.stat_poll_addr(vPoll, 36, 37)
        self.rs_addr(vRS, 36)
        vP1, vP2 = 104, 106
        a.m(f'''
        v_bfe_u32 v33, v2, 2, 2
        v_lshrrev_b32 v34, 5, v2
        v_lshl_add_u32 v34, v34, 3, v33
        v_and_b32 v35, 3, v2
        v_lshlrev_b32 v35, 3, v35
        v_lshl_add_u32 v35, v32, 10, v35
        v_lshl_add_u32 v36, v34, 6, v35
        v_lshl_add_u32 v36, v32, 5, v36
        v_add_u32 v{vP1}, {L_W1C0}, v36
        v_xor_b32 v{vP1+1}, 32, v{vP1}
        v_lshl_add_u32 v36, v34, 5, v35
        v_lshl_add_u32 v36, v32, 7, v36
        v_add_u32 v{vP2}, {L_W2C0}, v36
        v_xor_b32 v{vP2+1}, 128, v{vP2}
        s_cmp_eq_u32 s{sW}, 1
        s_cselect_b64 vcc, -1, 0
        v_cndmask_b32 v{vB2}, v{vP1}, v{vP1+1}, vcc
        v_add_u32 v{vB2+1}, 256, v{vB2}
        s_cmp_ge_u32 s{sW}, 2
        s_cselect_b64 vcc, -1, 0
        v_cndmask_b32 v{vB2}, v{vB2}, v{vP2}, vcc
        v_cndmask_b32 v{vB2+1}, v{vB2+1}, v{vP2+1}, vcc
        ''')
        a.e(f's_mov_b32 s{sH2}, s{sSafe}')
        self.stamp(1)
        a.wait_tag(['d0', 'rs']); a.e('s_barrier')
        self.stamp(2)
        self.flag_store(WS_FR).emit(a)
        def xa(s, ks, tbl): return ar((s * 8 + ks * 2 + tbl) * 4, 4)
        def wf(buf, v): return WF + 16 * buf + 4 * v
        def reads0(s, ks):
            buf = ks & 1
            r = []
            for v in range(4):
                for n in range(2):
                    r.append(Act(f'ds_read_b64_tr_b16 {vr(wf(buf, v) + 2 * n, 2)}, v{vWr + v} offset:{ks * 2048 + n * 512}'))
                if v < 2: r.append(Act(f'ds_read_b128 {xa(s, ks, v)}, v{vXr + ks} offset:{v * 4096}'))
            if s == 0:
                for n in range(2):
                    r.append(Act(f'ds_read_b64_tr_b16 {vr(vCSf + 2 * n, 2)}, v{vCSr} offset:{ks * 2048 + n * 512}'))
            if s == 2:
                o1, o2 = ks * 2048, (ks >> 1) * 2048 + (ks & 1) * 512
                r.append(Act([f's_cmp_lt_u32 s{sW}, 2', f's_mov_b32 s{sT2}, {o2}', f's_cselect_b32 s{sT2}, {o1}, s{sT2}',
                              f'v_add_u32 v{vB2+2}, s{sT2}, v{vB2}', f'v_add_u32 v{vB2+3}, s{sT2}, v{vB2+1}']))
                for n in range(2):
                    r.append(Act(f'ds_read_b64_tr_b16 {vr(vCSf + 2 * n, 2)}, v{vB2 + 2 + n}'))
            return r
        drain(a, reads0(0, 0))
        dmaq, miscq = [], []
        vNegm = 108
        vC1, vD = 116, 118
        vCSl = 120
        vCSd = 121
        miscq += seq(f'''
        v_and_b32 v{vCSl}, 31, v2
        v_lshlrev_b32 v{vCSl}, 2, v{vCSl}
        v_lshrrev_b32 v{vCSd}, 5, v2
        v_lshl_add_u32 v{vCSl}, v{vCSd}, 9, v{vCSl}
        v_add_u32 v{vCSl}, {L_CS}, v{vCSl}
        v_lshlrev_b32 v{vCSd}, 4, v2
        v_add_u32 v{vCSd}, {WS_CS}, v{vCSd}
        ''')
        def cs_dma(sreg_expr_acts, tag):
            return sreg_expr_acts + [Act([f's_lshl_b32 s{sT3}, s{sW}, 10', f's_add_u32 m0, s{sT3}, {L_CS}', 's_nop 0',
                    (f'buffer_load_dwordx4 v{vCSd}, {srd(sWS)}, s{sT2} offen sc1 lds', tag)])]
        def ext_reads(nunits, first):
            r = []
            for v in range(nunits):
                for i in range(4):
                    r.append(Act(f'ds_read_b32 v{wf(0, v) + i}, v{vCSl} offset:{(first + v) * 1024 + i * 128}'))
            return r
        for s in range(8):
            for ks in range(4):
                buf = ks & 1
                mf = []
                if s in (0, 2):
                    mf.append(mfma(vr(vCSacc, 16), vr(vOnes, 4), vr(vCSf, 4), '0' if ks == 0 else vr(vCSacc, 16)))
                for v in range(4):
                    for tbl in range(2):
                        acc = vr(ACC0 + 16 * (2 * v + tbl), 16)
                        mf.append(mfma(acc, vr(wf(buf, v), 4), xa(s, ks, tbl), '0' if (s == 0 and ks == 0) else acc))
                urgent = []
                if ks < 3:
                    urgent = reads0(s, ks + 1)
                    if ks == 2 and s < 7:
                        d = slot_of(s + 1) - slot_of(s)
                        urgent += [Act(f'v_add_u32 v{r_}, {d & 0xffffffff}, v{r_}') for r_ in list(range(vXr, vXr + 4)) + list(range(vWr, vWr + 4))]
                else:
                    def after(s=s):
                        if s + 3 < 8:
                            if s == 0: dmaq.extend([Act('s_nop 0')] * 0)
                            dmaq.extend(stage_dma(s + 3))
                        if s == 2: dmaq.insert(0, self.flag_store(WS_FC))
                        if s == 4: dmaq.insert(0, self.flag_store(WS_FC2))
                        if s == 5: dmaq.append(self.poll_issue(vPoll, vPoll + 1))
                        if s == 6:
                            for q in range(4, 8): dmaq.extend(w12_dma(q))
                    drain(a, dmaq)
                    tags = [f'd{s+1}'] if s < 7 else ['csd', 'rsl']
                    if s == 1: tags.append('w12_0')
                    if s in (2, 4): tags.append('csst')
                    if s == 4: self.ncs = 2
                    urgent = [self.barrier(tags, lg=0, after=after)]
                    if s < 7: urgent += reads0(s + 1, 0)
                    else:
                        urgent += ext_reads(4, 0)
                if s in (1, 3) and ks == 0:
                    pk = self.cs_pack_store(vCSacc, vCSst + (s == 3), vCSacc + 1)
                    dmaq[0:0] = pk
                if s == 6 and ks == 2:
                    dmaq.append(self.poll_check(vPoll, vPoll + 1))
                    dmaq.extend(self.rs_loads(vRS))
                    dmaq.extend(cs_dma([Act([f's_add_u32 s{sT2}, s{sH0}, s{sW}', f's_lshl_b32 s{sT2}, s{sT2}, 10'])], 'csd'))
                    for q in range(1, 4): dmaq.extend(w12_dma(q))
                if s == 7 and ks == 3:
                    for tbl in range(2):
                        miscq += [Act(f'v_mov_b32 v{vNegm + 4 * tbl + i}, v{vRS + 2 * tbl}') for i in range(4)]
                weave(a, mf, urgent, [dmaq, miscq], per_gap_urgent=3)
            if s == 3: self.stamp(3)
        drain(a, miscq)
        self.stamp(4)
        pC1, pD, pNeg, pP1, pP2, pCSl, pCSd, pHst = 5, 7, 16, 24, 26, 10, 12, 28
        mv = []
        for tbl in range(2):
            mv += [Act(f'v_rcp_f32 v{pC1 + tbl}, v{vRS + 2 * tbl + 1}'), Act(f'v_mov_b32 v{pD + tbl}, v{vRS + 2 * tbl + 1}')]
        for tbl in range(2):
            mv += [Act(f'v_mul_f32 v{pC1 + tbl}, {fbits(-LOG2E)}, v{pC1 + tbl}')]
        mv += [Act(f'v_mov_b32 v{pNeg + i}, v{vNegm + i}') for i in range(8)]
        mv += [Act(f'v_mov_b32 v{pP1 + i}, v{vP1 + i}') for i in range(4)]
        mv += [Act(f'v_mov_b32 v{pCSl}, v{vCSl}'), Act(f'v_mov_b32 v{pCSd}, v{vCSd}')]
        def reads1(st):
            buf = (st + 1) & 1
            return [Act(f'ds_read_b64_tr_b16 {vr(wf(buf, v) + 2 * n, 2)}, v{pP1 + v} offset:{st * 2048 + n * 256}') for v in range(2) for n in range(2)]
        mf = [mfma(vr(ACC0 + 16 * (2 * v + tbl), 16), vr(wf(0, v), 4), vr(vNegm + 4 * tbl, 4), vr(ACC0 + 16 * (2 * v + tbl), 16)) for v in range(4) for tbl in range(2)]
        assert not dmaq or True
        weave(a, mf, mv + reads1(0), [dmaq], per_gap_urgent=4)
        drain(a, dmaq)
        self.vCW, self.vCr, self.vCh, self.vCp, self.vCt = 56, 58, 60, 61, 40
        epi = []
        epi += seq(f'''
        s_lshr_b32 s{sT0}, s{sXc}, 15
        s_mul_i32 s{sT0}, s{sT0}, {112 * 1024}
        s_add_u32 s{sT0}, s{sT0}, {WS_H}
        v_lshl_add_u32 v{pHst}, v2, 4, s{sT0}
        s_lshr_b32 s{sT0}, s{sXc+4}, 15
        s_mul_i32 s{sT0}, s{sT0}, {112 * 1024}
        s_add_u32 s{sT0}, s{sT0}, {WS_H}
        v_lshl_add_u32 v{pHst+1}, v2, 4, s{sT0}
        s_lshl_b32 s{sH0}, s{sH0}, 10
        ''')
        def glu(acc, tbl, soff, imm, tag):
            r = []
            for j in range(8): r.append(Act(f'v_mul_f32 v{acc + j}, v{pC1 + tbl}, v{acc + j}'))
            for j in range(8): r.append(Act(f'v_exp_f32 v{acc + j}, v{acc + j}'))
            for j in range(8): r.append(Act(f'v_fma_f32 v{acc + j}, v{acc + j}, v{pD + tbl}, v{pD + tbl}'))
            for j in range(8): r.append(Act(f'v_rcp_f32 v{acc + j}, v{acc + j}'))
            for j in range(8): r.append(Act(f'v_mul_f32 v{acc + 8 + j}, v{acc + 8 + j}, v{acc + j}'))
            for i in range(4): r.append(Act(f'v_cvt_pk_bf16_f32 v{acc + i}, v{acc + 8 + 2 * i}, v{acc + 9 + 2 * i}'))
            r.append(Act((f'buffer_store_dwordx4 {vr(acc, 4)}, v{pHst + tbl}, {srd(sWS)}, s{soff} offen offset:{imm} sc1', tag)))
            return r
        for v in range(4):
            for tbl in range(2):
                epi += glu(ACC0 + 16 * (2 * v + tbl), tbl, sH0, v * 1024, 'h0a' if v < 2 else 'h0b')
        dmaq += self.c_addr_setup()
        for g in range(5): dmaq += self.c_wdma(g)
        vP = 63
        for st in range(32):
            buf = (st + 1) & 1
            s_, ks = st >> 2, st & 3
            mf = []
            for v in range(2):
                for tbl in range(2):
                    acc = vr(ACC1 + 16 * (2 * v + tbl), 16)
                    mf.append(mfma(acc, vr(wf(buf, v), 4), xa(s_, ks, tbl), '0' if st == 0 else acc))
            urgent = []
            if st == 3:
                def after():
                    dmaq.extend(self.c_wdma(5))
                urgent += [self.barrier([f'w12_{q}' for q in range(1, 4)], lg=0, after=after)]
                urgent += [Act(f'v_add_u32 v{pP1 + i}, {(-L_W1C0) & 0xffffffff}, v{pP1 + i}') for i in range(2)]
            if st == 15:
                def after():
                    for g in range(7, 11): dmaq.extend(self.c_wdma(g))
                urgent += [self.barrier([f'w12_{q}' for q in range(4, 8)], lg=0, after=after)]
                urgent += [Act(f'v_add_u32 v{pP1 + i}, {32 * K}, v{pP1 + i}') for i in range(2)]
            if st == 20:
                urgent += [self.barrier(['h0a'], after=lambda: dmaq.insert(0, self.flag_store(WS_FH0A)))]
            if st == 8:
                dmaq.extend([Act([f'v_and_b32 v{vP}, 7, v2', f's_lshl_b32 s{sT2}, s{sC}, 2', f's_add_u32 s{sT2}, s{sT2}, {WS_FC2}', f'v_lshl_add_u32 v{vP}, v{vP}, 7, s{sT2}']),
                             self.poll_issue(vP, 42)])
            if st == 16:
                dmaq.append(self.poll_check(vP, 42))
                dmaq.extend([Act([f's_add_u32 s{sT2}, s{sH1}, s{sW}', f's_cmp_lt_u32 s{sW}, 2', f's_cselect_b32 s{sT2}, s{sT2}, s{sH2}', f's_lshl_b32 s{sT2}, s{sT2}, 10']),
                             Act([f's_lshl_b32 s{sT3}, s{sW}, 10', f's_add_u32 m0, s{sT3}, {L_CS}', 's_nop 0',
                                  (f'buffer_load_dwordx4 v{pCSd}, {srd(sWS)}, s{sT2} offen sc1 lds', 'csd2')])])
            if st < 31: urgent += reads1(st + 1)
            else:
                drain(a, dmaq)
                def after():
                    for g in range(11, 15): dmaq.extend(self.c_wdma(g))
                urgent += [self.barrier(['csd2'], lg=0, after=after)]
                urgent += [Act(f'ds_read_b32 v{wf(1, v) + i}, v{pCSl} offset:{v * 1024 + i * 128}') for v in range(2) for i in range(4)]
            weave(a, mf, urgent, [dmaq, epi], per_gap_urgent=2 if st < 31 else 4)
        drain(a, epi)
        self.stamp(5)
        def reads2(st):
            buf = st & 1
            return [Act(f'ds_read_b64_tr_b16 {vr(wf(buf, 0) + 2 * n, 2)}, v{pP2 + n} offset:{(st >> 1) * 2048 + (st & 1) * 512}') for n in range(2)]
        mf = [mfma(vr(ACC1 + 16 * (2 * v + tbl), 16), vr(wf(1, v), 4), vr(pNeg + 4 * tbl, 4), vr(ACC1 + 16 * (2 * v + tbl), 16)) for v in range(2) for tbl in range(2)]
        weave(a, mf, reads2(0) + [Act(f's_lshl_b32 s{sH1}, s{sH1}, 10'), Act(f's_lshl_b32 s{sH2}, s{sH2}, 10')], [dmaq])
        epi = [Act('s_nop 0', cost=24)]
        for v in range(2):
            for tbl in range(2):
                epi += glu(ACC1 + 16 * (2 * v + tbl), tbl, sH1, v * 1024, 'h1')
        self.ring = lambda s: vr(160 + 4 * (s % 24), 4)
        pi, pc = self.c_poll(WS_FH0A, WS_FH0A)
        for st in range(32):
            buf = st & 1
            s_, ks = st >> 2, st & 3
            mf = [mfma(vr(ACC2 + 16 * tbl, 16), vr(wf(buf, 0), 4), xa(s_, ks, tbl), '0' if st == 0 else vr(ACC2 + 16 * tbl, 16)) for tbl in range(2)]
            urgent = []
            if st == 3:
                urgent += [Act(f'v_add_u32 v{pP2 + i}, {(32 * K - L_W2C0) & 0xffffffff}, v{pP2 + i}') for i in range(2)]
            if st == 6:
                def after():
                    dmaq.insert(0, self.flag_store(WS_FH0B))
                    dmaq.extend(self.c_wdma(6))
                    dmaq.extend(pi)
                urgent += [self.barrier(['h0b'], lg=0, after=after)]
            if st == 18:
                dmaq.append(pc)
                for s2 in range(12): dmaq.extend(self.c_hload(s2))
            if st < 31: urgent += reads2(st + 1)
            else:
                urgent += [Act(f'ds_read_b32 v{wf(0, 1) + i}, v{pCSl} offset:{2 * 1024 + i * 128}') for i in range(4)]
            weave(a, mf, urgent, [dmaq, epi], per_gap_urgent=2 if st < 31 else 4)
        mf = [mfma(vr(ACC2 + 16 * tbl, 16), vr(wf(0, 1), 4), vr(pNeg + 4 * tbl, 4), vr(ACC2 + 16 * tbl, 16)) for tbl in range(2)]
        weave(a, mf, [], [dmaq, epi])
        drain(a, dmaq); drain(a, epi)
        self.stamp(6)
        for tbl in range(2): drain(a, glu(ACC2 + 16 * tbl, tbl, sH2, 0, 'h2'))
        self.stamp(7)
        extra = {0: ('h1', WS_FH1), 1: ('h2', WS_FH2)}
        self.phase_c(first_h=12, missing=list(range(15, 19)), flags=extra)

    def q_role(self):
        a = self.a
        a.label('L_qrole')
        self.vTag, self.vFlag = 13, 14
        self.ndma, self.ncs = 11, 1
        a.issued = {}
        vWl, vWb_ = 24, 26
        vXr, vWr, vCSr = 16, 20, 21
        WF, XF = 32, 160
        ACC = 64
        vCSacc, vCSf, vOnes = 176, 56, 60
        a.m(f'''
        s_mov_b32 s{sWa}, s6
        s_mov_b32 s{sWa+1}, s7
        s_mov_b32 s{sWa+2}, 1572864
        s_mul_i32 s{sT2}, s{sW}, {16 * 3072}
        s_lshl_b32 s{sT3}, s{sCol}, 6
        s_add_u32 s{sT2}, s{sT2}, s{sT3}
        v_lshrrev_b32 v9, 2, v2
        v_mul_u32_u24 v9, 3072, v9
        v_and_b32 v{vWb_}, 3, v2
        v_lshl_add_u32 v{vWb_}, v{vWb_}, 4, s{sT2}
        v_add_u32 v{vWb_}, v{vWb_}, v9
        s_mul_i32 s{sT2}, s{sChunk}, {64 * 3072}
        v_add_u32 v{vWl}, s{sT2}, v{vWb_}
        s_mul_i32 s{sM0W}, s{sW}, 3072
        ''')
        def w_dma(s):
            acts = []
            for mat in range(3):
                it = []
                if mat == 0: it += [f's_add_u32 m0, s{sM0W}, {slot_of(s) + 32768}', 's_nop 0']
                it.append((f'buffer_load_dwordx4 v{vWl}, {srd(sWa)}, 0 offen offset:{1024 * mat} lds', f'd{s}'))
                acts.append(Act(it))
            return acts
        def stage_dma(s):
            return w_dma(s) + self.x_dma(s) + self.next_chunk(3072, [(vWl, vWb_)])
        drain(a, stage_dma(0))
        self.code_prefetch(9)
        self.row_stats()
        drain(a, stage_dma(1)); drain(a, stage_dma(2))
        self.tag_setup()
        self.stamp(0)
        vTabH, vTabH2, vTabW = 3, 4, 9
        self.vTabH, self.vTabH2, self.vTabW = vTabH, vTabH2, vTabW
        self.c_setup(vTabH, vTabH2, vTabW, 32)
        self.xread_addr(vXr, slot_of(0))
        vCSst, vPoll, vRS, vCSl, vCSd = 22, 192, 194, 200, 201
        a.m(f'''
        v_bfe_u32 v33, v2, 2, 2
        v_lshrrev_b32 v34, 5, v2
        v_lshl_add_u32 v34, v34, 3, v33
        v_lshlrev_b32 v34, 6, v34
        v_bfe_u32 v32, v2, 4, 1
        v_lshl_add_u32 v34, v32, 5, v34
        v_and_b32 v35, 3, v2
        v_lshl_add_u32 v34, v35, 3, v34
        v_add_u32 v{vWr}, {slot_of(0) + 32768}, v34
        s_min_u32 s{sT0}, s{sW}, 2
        s_lshl_b32 s{sT1}, s{sT0}, 10
        v_add_u32 v{vCSr}, s{sT1}, v{vWr}
        v_mov_b32 v{vOnes}, 0x3f803f80
        v_mov_b32 v{vOnes+1}, 0x3f803f80
        v_mov_b32 v{vOnes+2}, 0x3f803f80
        v_mov_b32 v{vOnes+3}, 0x3f803f80
        s_lshl_b32 s{sT0}, s{sT0}, 4
        s_add_u32 s{sT0}, s{sT0}, s{sCol}
        s_add_u32 s{sT0}, s{sT0}, 112
        s_lshl_b32 s{sH0}, s{sT0}, 10
        s_lshl_b32 s{sT1}, s{sR}, 7
        s_add_u32 s{sT1}, s{sT1}, {WS_CS}
        s_add_u32 s{sT0}, s{sH0}, s{sT1}
        s_cmp_eq_u32 s{sW}, 3
        s_cselect_b32 s{sT0}, {OOB}, s{sT0}
        v_and_b32 v36, 31, v2
        v_lshl_add_u32 v{vCSst}, v36, 2, s{sT0}
        v_lshlrev_b32 v{vCSl}, 2, v36
        v_lshrrev_b32 v37, 5, v2
        v_lshl_add_u32 v{vCSl}, v37, 9, v{vCSl}
        v_add_u32 v{vCSl}, {L_CS}, v{vCSl}
        v_lshlrev_b32 v{vCSd}, 4, v2
        v_add_u32 v{vCSd}, {WS_CS}, v{vCSd}
        ''')
        self.stat_poll_addr(vPoll, 36, 37)
        self.rs_addr(vRS, 36)
        MD, MF = 224, 240
        a.m(f'''
        v_and_b32 v36, 31, v2
        v_lshrrev_b32 v37, 5, v2
        v_lshlrev_b32 v37, 2, v37
        v_sub_u32 v36, v36, v37
        v_mov_b32 v37, {fbits(-1e30)}
        ''')
        for r_ in range(16):
            key = 8 * (r_ >> 2) + (r_ & 3)
            a.e(f'v_cmp_le_i32 vcc, {key}, v36')
            a.e(f'v_cndmask_b32 v{MD + r_}, v37, 0, vcc')
            a.e(f'v_cndmask_b32 v{MF + r_}, 0, v37, vcc')
        self.stamp(1)
        a.wait_tag(['d0', 'rs']); a.e('s_barrier')
        self.stamp(2)
        self.flag_store(WS_FR).emit(a)
        def wf(buf, m): return WF + 12 * buf + 4 * m
        def xf(buf, t): return XF + 8 * buf + 4 * t
        def reads(s, ks):
            buf = ks & 1
            r = []
            for m in range(3):
                for n in range(2):
                    r.append(Act(f'ds_read_b64_tr_b16 {vr(wf(buf, m) + 2 * n, 2)}, v{vWr} offset:{ks * 3072 + m * 1024 + n * 256}'))
                if m < 2: r.append(Act(f'ds_read_b128 {vr(xf(buf, m), 4)}, v{vXr + ks} offset:{m * 4096}'))
            if s == 0:
                for n in range(2):
                    r.append(Act(f'ds_read_b64_tr_b16 {vr(vCSf + 2 * n, 2)}, v{vCSr} offset:{ks * 3072 + n * 256}'))
            return r
        drain(a, reads(0, 0))
        dmaq, miscq = [], []
        for s in range(8):
            for ks in range(4):
                buf = ks & 1
                mf = []
                if s == 0:
                    mf.append(mfma(vr(vCSacc, 16), vr(vOnes, 4), vr(vCSf, 4), '0' if ks == 0 else vr(vCSacc, 16)))
                for m in range(3):
                    for tbl in range(2):
                        acc = vr(ACC + 32 * m + 16 * tbl, 16)
                        c_ = '0' if (s == 0 and ks == 0) else acc
                        if m < 2: mf.append(mfma(acc, vr(wf(buf, m), 4), vr(xf(buf, tbl), 4), c_))
                        else: mf.append(mfma(acc, vr(xf(buf, tbl), 4), vr(wf(buf, m), 4), c_))
                urgent = []
                if ks < 3:
                    urgent = reads(s, ks + 1)
                    if ks == 2 and s < 7:
                        d = slot_of(s + 1) - slot_of(s)
                        urgent += [Act(f'v_add_u32 v{r_}, {d & 0xffffffff}, v{r_}') for r_ in list(range(vXr, vXr + 4)) + [vWr]]
                elif s < 7:
                    def after(s=s):
                        if s + 3 < 8: dmaq.extend(stage_dma(s + 3))
                        if s == 2: dmaq.insert(0, self.flag_store(WS_FC))
                    drain(a, dmaq)
                    tags = [f'd{s+1}'] + (['csst'] if s == 2 else [])
                    urgent = [self.barrier(tags, lg=0, after=after)] + reads(s + 1, 0)
                if s == 1 and ks == 0:
                    dmaq[0:0] = self.cs_pack_store(vCSacc, vCSst, vCSacc + 1)
                if s == 6 and ks == 1: dmaq.append(self.poll_issue(vPoll, vPoll + 1))
                if s == 7 and ks == 0:
                    dmaq.append(self.poll_check(vPoll, vPoll + 1))
                    dmaq.extend(self.rs_loads(vRS))
                    dmaq.append(Act([f's_lshl_b32 s{sT3}, s{sW}, 10', f's_add_u32 m0, s{sT3}, {L_CS}', 's_nop 0',
                                     (f'buffer_load_dwordx4 v{vCSd}, {srd(sWS)}, s{sH0} offen sc1 lds', 'csd')]))
                weave(a, mf, urgent, [dmaq, miscq], per_gap_urgent=3)
            if s == 3: self.stamp(3)
        drain(a, dmaq)
        self.stamp(4)
        vNeg = 160
        vRstd, vQs = 168, 170
        vRt = 172
        vRv = 176
        vKw, vVw, vKg = 22, 24, 26
        a.wait_tag(['csd', 'rsl'], lg=0); a.e('s_barrier')
        for m in range(3):
            for i in range(4): a.e(f'ds_read_b32 v{wf(0, m) + i}, v{vCSl} offset:{m * 1024 + i * 128}')
        for tbl in range(2):
            for i in range(4): a.e(f'v_mov_b32 v{vNeg + 4 * tbl + i}, v{vRS + 2 * tbl}')
            a.e(f'v_rcp_f32 v{vRstd + tbl}, v{vRS + 2 * tbl + 1}')
        a.m(f'''
        v_and_b32 v{vRt}, 31, v2
        s_lshl_b32 s{sT0}, s{sW}, 8
        s_add_u32 s{sT0}, s{sT0}, {L_RST - 8 * K}
        v_lshl_add_u32 v{vRt}, v{vRt}, 2, s{sT0}
        ''')
        a.e(f'ds_write_b32 v{vRt}, v{vRstd}')
        a.e(f'ds_write_b32 v{vRt}, v{vRstd+1} offset:128')
        for m in (1, 2, 0):
            for tbl in range(2):
                acc = vr(ACC + 32 * m + 16 * tbl, 16)
                if m < 2: a.e(mfma(acc, vr(wf(0, m), 4), vr(vNeg + 4 * tbl, 4), acc))
                else: a.e(mfma(acc, vr(vNeg + 4 * tbl, 4), vr(wf(0, m), 4), acc))
            if m == 1:
                a.m(f'''
                v_lshrrev_b32 v{vRt}, 5, v2
                v_lshl_add_u32 v{vRt}, v{vRt}, 4, s{sT0}
                v_mul_f32 v{vQs}, {fbits(0.25 * LOG2E)}, v{vRstd}
                v_mul_f32 v{vQs+1}, {fbits(0.25 * LOG2E)}, v{vRstd+1}
                s_sub_u32 s{sT1}, 7, s{sW}
                s_lshl_b32 s{sT2}, s{sW}, 10
                s_add_u32 s{sT2}, s{sT2}, {L_K + 8 * K}
                v_lshl_add_u32 v{vKw}, v2, 4, s{sT2}
                s_lshl_b32 s{sT2}, s{sT1}, 10
                s_add_u32 s{sT2}, s{sT2}, {L_K + 8 * K}
                v_lshl_add_u32 v{vKw+1}, v2, 4, s{sT2}
                s_mul_i32 s{sT2}, s{sW}, {2 * VSTR}
                s_add_u32 s{sT2}, s{sT2}, {L_V + 16 * VSTR}
                v_lshl_add_u32 v{vVw}, v2, 4, s{sT2}
                s_mul_i32 s{sT2}, s{sT1}, {2 * VSTR}
                s_add_u32 s{sT2}, s{sT2}, {L_V + 16 * VSTR}
                v_lshl_add_u32 v{vVw+1}, v2, 4, s{sT2}
                ''')
            if m == 2:
                a.m(f'''
                s_lshl_b32 s{sH1}, s{sR}, 4
                s_add_u32 s{sH1}, s{sH1}, s{sCol}
                s_lshl_b32 s{sH1}, s{sH1}, 15
                s_add_u32 s{sH1}, s{sH1}, {WS_KV}
                s_lshl_b32 s{sT2}, s{sW}, 10
                v_lshl_add_u32 v{vKg}, v2, 4, s{sT2}
                s_lshl_b32 s{sT2}, s{sT1}, 10
                v_lshl_add_u32 v{vKg+1}, v2, 4, s{sT2}
                s_lshl_b32 s{sT2}, s{sW}, 11
                s_add_u32 s{sT2}, s{sT2}, 16384
                v_lshl_add_u32 v{vKg+2}, v2, 4, s{sT2}
                s_lshl_b32 s{sT2}, s{sT1}, 11
                s_add_u32 s{sT2}, s{sT2}, 16384
                v_lshl_add_u32 v{vKg+3}, v2, 4, s{sT2}
                s_add_u32 s{sH2}, s{sH1}, 8192
                ''')
        for tbl in range(2):
            acc = ACC + 32 + 16 * tbl
            for j in range(16): a.e(f'v_mul_f32 v{acc + j}, v{vRstd + tbl}, v{acc + j}')
            for i in range(8): a.e(f'v_cvt_pk_bf16_f32 v{acc + i}, v{acc + 2 * i}, v{acc + 2 * i + 1}')
            if tbl == 0:
                for i in range(4): a.e(f'ds_read_b128 {vr(vRv + 4 * i, 4)}, v{vRt} offset:{i * 32}')
            for hh in range(2):
                a.e(f'buffer_store_dwordx4 {vr(acc + 4 * hh, 4)}, v{vKg + tbl}, {srd(sWS)}, s{sH2 if hh else sH1} offen sc1', tag='kv')
                a.e(f'ds_write_b128 v{vKw + tbl}, {vr(acc + 4 * hh, 4)} offset:{hh * 16384}')
        for tbl in range(2):
            acc = ACC + 64 + 16 * tbl
            for j in range(16): a.e(f'v_mul_f32 v{acc + j}, v{vRv + j}, v{acc + j}')
            if tbl == 0:
                for i in range(4): a.e(f'ds_read_b128 {vr(vRv + 4 * i, 4)}, v{vRt} offset:{128 + i * 32}')
            for i in range(8): a.e(f'v_cvt_pk_bf16_f32 v{acc + i}, v{acc + 2 * i}, v{acc + 2 * i + 1}')
            for t in range(2):
                a.e(f'buffer_store_dwordx4 {vr(acc + 4 * t, 4)}, v{vKg + 2 + tbl}, {srd(sWS)}, s{sH1} offen offset:{t * 1024} sc1', tag='kv')
                a.e(f'ds_write_b128 v{vVw + tbl}, {vr(acc + 4 * t, 4)} offset:{t * VSTR}')
        QF = 32
        for tbl in range(2):
            acc = ACC + 16 * tbl
            for j in range(16): a.e(f'v_mul_f32 v{acc + j}, v{vQs + tbl}, v{acc + j}')
            for i in range(8): a.e(f'v_cvt_pk_bf16_f32 v{QF + 8 * tbl + i}, v{acc + 2 * i}, v{acc + 2 * i + 1}')
        vKr, vVr = 16, 18
        a.m(f'''
        v_and_b32 v48, 31, v2
        v_mul_u32_u24 v49, {VSTR}, v48
        v_add_u32 v49, {L_V + 1024}, v49
        s_cmp_eq_u32 s{sR}, 0
        s_cselect_b32 s{sT2}, 16, 0
        v_cmp_le_u32 vcc, s{sT2}, v48
        v_mov_b32 v52, 0x3f803f80
        v_cndmask_b32 v52, 0, v52, vcc
        v_mov_b32 v53, v52
        v_mov_b32 v54, v52
        v_mov_b32 v55, v52
        ds_write_b128 v49, v[52:55]
        v_subrev_u32 v{vKr}, {8 * K}, v{vKw}
        v_subrev_u32 v{vKr+1}, {8 * K}, v{vKw+1}
        v_bfe_u32 v48, v2, 4, 1
        v_cmp_eq_u32 vcc, 0, v48
        v_lshlrev_b32 v50, 4, v2
        v_mov_b32 v51, 1024
        v_cndmask_b32 v48, v51, v50, vcc
        v_cndmask_b32 v49, v50, v51, vcc
        s_mul_i32 s{sT2}, s{sW}, {2 * VSTR}
        s_add_u32 s{sT2}, s{sT2}, {L_V}
        v_add_u32 v{vVr}, s{sT2}, v48
        v_add_u32 v{vVr+2}, s{sT2}, v49
        s_mul_i32 s{sT2}, s{sT1}, {2 * VSTR}
        s_add_u32 s{sT2}, s{sT2}, {L_V}
        v_add_u32 v{vVr+1}, s{sT2}, v48
        v_add_u32 v{vVr+3}, s{sT2}, v49
        ''')
        a.wait(lg=0); a.e('s_barrier')
        self.stamp(5)
        self.attention(QF, vKr, vVr, MD, MF)

    def attention(self, QF, vKr, vVr, MD, MF):
        a = self.a
        SB, OA = 64, 96
        self.vCW, self.vCr, self.vCh, self.vCp, self.vCt = 56, 58, 60, 61, 48
        vPk, vHd = 22, 24
        vOst = 26
        def oa(tbl, hh): return OA + 32 * tbl + 16 * hh
        def qf(tbl, hh): return vr(QF + 8 * tbl + 4 * hh, 4)
        side = []
        side += self.c_addr_setup()
        side += seq(f'''
        s_sub_u32 s{sT0}, s{sR}, 1
        s_max_i32 s{sT0}, s{sT0}, 0
        s_lshl_b32 s{sT2}, s{sT0}, 5
        s_add_u32 s{sT2}, s{sT2}, s{sC}
        s_lshl_b32 s{sT2}, s{sT2}, 2
        s_add_u32 s{sT2}, s{sT2}, {WS_FKV}
        v_mov_b32 v{vPk}, s{sT2}
        s_lshl_b32 s{sT0}, s{sT0}, 4
        s_add_u32 s{sT0}, s{sT0}, s{sCol}
        s_lshl_b32 s{sT0}, s{sT0}, 15
        s_add_u32 s{sT0}, s{sT0}, {WS_KV}
        s_lshl_b32 s{sT2}, s{sW}, 12
        s_add_u32 s{sT0}, s{sT0}, s{sT2}
        v_lshl_add_u32 v{vHd}, v2, 4, s{sT0}
        v_add_u32 v{vHd+1}, 16384, v{vHd}
        s_lshr_b32 s{sT0}, s{sXc}, 15
        s_lshl_b32 s{sT0}, s{sT0}, 4
        s_add_u32 s{sT0}, s{sT0}, s{sCol}
        s_lshl_b32 s{sT0}, s{sT0}, 11
        s_add_u32 s{sT0}, s{sT0}, {WS_O}
        v_lshl_add_u32 v{vOst}, v2, 4, s{sT0}
        s_lshr_b32 s{sT0}, s{sXc+4}, 15
        s_lshl_b32 s{sT0}, s{sT0}, 4
        s_add_u32 s{sT0}, s{sT0}, s{sCol}
        s_lshl_b32 s{sT0}, s{sT0}, 11
        s_add_u32 s{sT0}, s{sT0}, {WS_O}
        v_lshl_add_u32 v{vOst+1}, v2, 4, s{sT0}
        ''')
        drain(a, side)
        self.expect(['kv']); a.wait_tag('kv'); a.e('s_barrier')
        self.flag_store(WS_FKV).emit(a)
        for g in list(range(0, 6)) + list(range(7, 11)): drain(a, self.c_wdma(g))
        self.poll_issue(vPk, vPk + 1).emit(a)
        self.poll_check(vPk, vPk + 1).emit(a)
        self.stamp(6)
        a.m(f'''
        s_cmp_eq_u32 s{sR}, 0
        s_cbranch_scc1 L_zero_halo
        s_lshr_b32 s{sT0}, s{sW}, 1
        s_lshl_b32 s{sT0}, s{sT0}, 14
        s_and_b32 s{sT2}, s{sW}, 1
        s_lshl_b32 s{sT2}, s{sT2}, 12
        s_add_u32 s{sT0}, s{sT0}, s{sT2}
        s_add_u32 m0, s{sT0}, {L_K}
        s_mul_i32 s{sT2}, s{sW}, {4 * VSTR}
        ''')
        for q in range(4): a.e(f'buffer_load_dwordx4 v{vHd}, {srd(sWS)}, 0 offen offset:{q * 1024} sc1 lds', tag='halo')
        for q in range(4):
            a.e(f's_add_u32 m0, s{sT2}, {L_V + q * (VSTR - 1024)}')
            a.e(f'buffer_load_dwordx4 v{vHd+1}, {srd(sWS)}, 0 offen offset:{q * 1024} sc1 lds', tag='halo')
        a.label('L_halo_done')
        self.slow.append(f'''L_zero_halo:
  v_mov_b32 v48, 0
  v_mov_b32 v49, 0
  v_mov_b32 v50, 0
  v_mov_b32 v51, 0
  s_lshr_b32 s{sT0}, s{sW}, 1
  s_lshl_b32 s{sT0}, s{sT0}, 14
  s_and_b32 s{sT2}, s{sW}, 1
  s_lshl_b32 s{sT2}, s{sT2}, 12
  s_add_u32 s{sT0}, s{sT0}, s{sT2}
  s_add_u32 s{sT0}, s{sT0}, {L_K}
  v_lshl_add_u32 v52, v2, 4, s{sT0}
  s_mul_i32 s{sT2}, s{sW}, {4 * VSTR}
  s_add_u32 s{sT2}, s{sT2}, {L_V}
  v_lshl_add_u32 v53, v2, 4, s{sT2}
''' + ''.join(f'  ds_write_b128 v52, v[48:51] offset:{q * 1024}\n  ds_write_b128 v53, v[48:51] offset:{q * VSTR}\n' for q in range(4)) +
'''  s_waitcnt vmcnt(0) lgkmcnt(0)
  s_branch L_halo_done
''')
        a.wait_tag('halo', lg=0); a.e('s_barrier')
        self.stamp(7)
        NEG = 160
        vM = 48
        for tbl in range(2):
            for hh in range(2):
                for t in range(9): a.e(f'ds_read_b128 {ar(4 * t, 4)}, v{vKr + tbl} offset:{hh * 16384 + t * 1024}')
                lim = None
                for t in range(9):
                    sb = SB + 16 * (t & 1)
                    c_ = vr(MF, 16) if t == 0 else vr(MD, 16) if t == 8 else '0'
                    a.e(mfma(vr(sb, 16), ar(4 * t, 4), qf(tbl, hh), c_))
                    if t > 0: self.maxred(vM, SB + 16 * ((t - 1) & 1), t - 1, tbl)
                self.maxred(vM, SB, 8, tbl)
                a.m(f'''
                v_mov_b32 v{vM+1}, v{vM}
                v_permlane32_swap_b32 v{vM}, v{vM+1}
                v_max_f32 v{vM}, v{vM}, v{vM+1}
                ''')
                for j in range(16): a.e(f'v_sub_f32 v{NEG + j}, 0, v{vM}')
                for t in range(8, -1, -1):
                    sb = SB + 16 * (t & 1)
                    lab = self.skip_if_void(t, tbl)
                    for tt in range(2): a.e(f'ds_read_b128 {ar(40 + 8 * (t & 1) + 4 * tt, 4)}, v{vVr + 2 * hh + tbl} offset:{(2 * t + tt) * VSTR}')
                    if t in (0, 8):
                        for j in range(16): a.e(f'v_sub_f32 v{NEG + 16 + j}, v{(MF if t == 0 else MD) + j}, v{vM}')
                    a.e(mfma(vr(sb, 16), ar(4 * t, 4), qf(tbl, hh), vr(NEG + 16, 16) if t in (0, 8) else vr(NEG, 16)))
                    for j in range(16): a.e(f'v_exp_f32 v{sb + j}, v{sb + j}')
                    for i in range(8): a.e(f'v_cvt_pk_bf16_f32 v{sb + i}, v{sb + 2 * i}, v{sb + 2 * i + 1}')
                    o = vr(oa(tbl, hh), 16)
                    a.e(mfma(o, ar(40 + 8 * (t & 1), 4), vr(sb, 4), '0' if t == 8 else o))
                    a.e(mfma(o, ar(44 + 8 * (t & 1), 4), vr(sb + 4, 4), o))
                    assert not a.lg
                    if lab:
                        a.label(lab); a.fence()
                self.o_final(oa(tbl, hh), hh, vOst + tbl)
        self.stamp(8)
        self.ring = lambda s: ar(64 + 4 * (s % 24), 4)
        pi, pc = self.c_poll(WS_FH0A, WS_FH0A)
        drain(a, pi); pc.emit(a)
        a.wait(lg=0); a.e('s_barrier')
        self.phase_c(first_h=0, missing=[6] + list(range(11, 19)), flags={1: ('o', WS_FO)})

    def skip_if_void(self, t, tbl):
        if t == 8: return None
        a = self.a
        self.nlab += 1
        if tbl == 0: a.e(f's_add_u32 s{sT0}, s{sW}, {t}')
        else: a.e(f's_sub_u32 s{sT0}, {7 + t}, s{sW}')
        a.e(f's_lshr_b32 s{sT0}, s{sT0}, 3')
        a.e(f's_or_b32 s{sT0}, s{sT0}, s{sR}')
        a.e(f's_cbranch_scc0 L_mx{self.nlab}')
        return f'L_mx{self.nlab}'

    def maxred(self, vM, sb, t, tbl):
        a = self.a
        if t == 0: a.e(f'v_mov_b32 v{vM}, {fbits(-1e30)}')
        lab = self.skip_if_void(t, tbl)
        for i in range(8): a.e(f'v_max3_f32 v{vM}, v{vM}, v{sb + 2 * i}, v{sb + 2 * i + 1}')
        if lab: a.label(lab)

    def o_final(self, o, hh, vst):
        a = self.a
        od, l_ = (o, o + 8) if hh == 0 else (o + 8, o)
        a.e(f'v_rcp_f32 v{l_}, v{l_}')
        for j in range(8): a.e(f'v_mul_f32 v{od + j}, v{od + j}, v{l_}')
        for i in range(4): a.e(f'v_cvt_pk_bf16_f32 v{od + i}, v{od + 2 * i}, v{od + 2 * i + 1}')
        a.e(f'buffer_store_dwordx4 {vr(od, 4)}, v{vst}, {srd(sWS)}, 0 offen offset:{hh * 1024} sc1', tag='o')

    def phase_c(self, first_h, missing, flags):
        a = self.a
        if self.opt.get('stop') == 'ab':
            tags = [t for t, _ in flags.values()]
            a.wait(vm=0, lg=0); a.e('s_barrier')
            for t, base in flags.values(): self.flag_store(base).emit(a)
            self.finish()
            return
        FF, SA, WF = 64, 96, 32
        XR = 128
        vXo, vEx = 136, 138
        sel = 140
        dmaq = []
        a.wait(lg=0); a.e('s_barrier')
        for g in missing: dmaq += self.c_wdma(g)
        LA = 12
        issued = first_h
        polls = {16: self.c_poll(WS_FH0B, WS_FH0B), 32: self.c_poll(WS_FH1, WS_FH1), 40: self.c_poll(WS_FO + 64, WS_FH1), 56: self.c_poll(WS_FO + 64, WS_FH2)}
        def rd(s):
            g, par = s >> 1, s & 1
            base = CGRP[g % NG] + par * 2048
            r = []
            for fb in range(2):
                for n in range(2):
                    off = base + n * 1024
                    reg = self.vCr + fb
                    r.append((fb, n, off))
            return r
        vCr2 = 142
        pre = [Act(f'v_add_u32 v{vCr2 + 2 * k + fb}, {(k + 1) * 64 * K}, v{self.vCr + fb}') for k in range(2) for fb in range(2)]
        pre += seq(f'''
        s_lshl_b32 s{sT0}, s{sT}, 1
        s_and_b32 s{sT2}, s{sW}, 1
        s_add_u32 s{sT0}, s{sT0}, s{sT2}
        s_lshl_b32 s{sT0}, s{sT0}, 15
        s_lshl_b32 s{sT2}, s{sFc}, 7
        s_add_u32 s{sT0}, s{sT0}, s{sT2}
        s_lshr_b32 s{sT2}, s{sW}, 1
        s_lshl_b32 s{sT2}, s{sT2}, 6
        s_add_u32 s{sT0}, s{sT0}, s{sT2}
        v_and_b32 v{vXo}, 31, v2
        v_lshl_add_u32 v{vXo}, v{vXo}, 10, s{sT0}
        v_lshrrev_b32 v{vXo+1}, 5, v2
        v_lshl_add_u32 v{vXo+1}, v{vXo+1}, 3, v{vXo}
        v_lshrrev_b32 v{vEx}, 5, v2
        v_lshl_add_u32 v{vXo}, v{vEx}, 4, v{vXo}
        ''')
        pre += [Act((f'buffer_load_dwordx2 v[{XR + 2 * i}:{XR + 2 * i + 1}], v{vXo+1}, {srd(sX)}, 0 offen offset:{16 * i}', 'xres')) for i in range(4)]
        drain(a, pre)
        def reads(s):
            buf = s & 1
            r = []
            for fb, n, off in rd(s):
                k = off >> 16
                reg = self.vCr + fb if k == 0 else vCr2 + 2 * (k - 1) + fb
                r.append(Act(f'ds_read_b64_tr_b16 {vr(WF + 8 * buf + 4 * fb + 2 * n, 2)}, v{reg} offset:{off & 0xffff}'))
            return r
        hq = []
        def want(upto):
            nonlocal issued
            while issued < min(upto, 72):
                if issued in polls:
                    pi_, pc_ = polls[issued]
                    hq.extend(pi_); hq.append(pc_)
                hq.extend(self.c_hload(issued)); issued += 1
        want(LA); drain(a, hq)
        a.wait_tag([f'cw{g}' for g in range(0, 4)], lg=0); a.e('s_barrier')
        self.stamp(9)
        drain(a, reads(0))
        nb = 0
        for s in range(72):
            buf = s & 1
            base = FF if s < 40 else SA
            mf = [mfma(vr(base + 16 * fb, 16), vr(WF + 8 * buf + 4 * fb, 4), self.ring(s), '0' if s in (0, 40) else vr(base + 16 * fb, 16)) for fb in range(2)]
            urgent = []
            if s % 8 == 7 and s < 71:
                g0 = (s + 1) >> 1
                fl = flags.get(nb)
                def after(g0=g0, fl=fl):
                    if fl: dmaq.insert(0, self.flag_store(fl[1]))
                    for g in range(g0 - 4 + NG, g0 + NG):
                        if g < 36: dmaq.extend(self.c_wdma(g))
                drain(a, dmaq)
                tags = [f'cw{g}' for g in range(g0, g0 + 4)] + ([fl[0]] if fl else [])
                urgent.append(self.barrier(tags, lg=0, after=after))
                nb += 1
            if s < 71: urgent += reads(s + 1)
            want(s + 1 + LA)
            weave(a, mf, urgent, [hq, dmaq], per_gap_urgent=3)
        drain(a, hq); drain(a, dmaq)
        self.stamp(10)
        a.m(f'''
        s_lshl_b32 s{sT0}, s{sW}, 13
        v_lshl_add_u32 v{vEx}, v2, 4, s{sT0}
        v_xor_b32 v{vEx+1}, 0x4000, v{vEx}
        s_cmp_lt_u32 s{sW}, 2
        ''')
        a.wait(lg=0); a.e('s_barrier')
        a.e('s_cbranch_scc0 ' + f'L_finB{self.nlab}')
        lab = self.nlab
        state = (list(a.vm), list(a.lg), list(a.hist))
        for half in range(2):
            if half == 1:
                a.label(f'L_finB{lab}')
                a.vm, a.lg, a.hist = list(state[0]), list(state[1]), list(state[2])
            own, oth = half, 1 - half
            for i in range(4): a.e(f'ds_write_b128 v{vEx}, {vr(FF + 16 * oth + 4 * i, 4)} offset:{i * 1024}')
            for i in range(4): a.e(f'ds_write_b128 v{vEx}, {vr(SA + 16 * oth + 4 * i, 4)} offset:{4096 + i * 1024}')
            if half == 1:
                for j in range(16): a.e(f'v_add_f32 v{FF + 16 + j}, v{FF + 16 + j}, v{SA + 16 + j}')
            XU = 146
            for i in range(8):
                a.e(f'v_lshlrev_b32 v{XU + 2 * i}, 16, v{XR + i}')
                a.e(f'v_and_b32 v{XU + 2 * i + 1}, 0xffff0000, v{XR + i}')
            a.wait(lg=0); a.e('s_barrier')
            P0, P1 = FF + 16 * oth, SA + 16 * oth
            for i in range(4): a.e(f'ds_read_b128 {vr(P0 + 4 * i, 4)}, v{vEx+1} offset:{i * 1024}')
            for i in range(4): a.e(f'ds_read_b128 {vr(P1 + 4 * i, 4)}, v{vEx+1} offset:{4096 + i * 1024}')
            f_ = FF + 16 * own
            for j in range(16): a.e(f'v_add_f32 v{f_ + j}, v{f_ + j}, v{P0 + j}')
            if half == 0:
                for j in range(16): a.e(f'v_add_f32 v{f_ + j}, v{f_ + j}, v{P1 + j}')
                s_ = SA
            else:
                s_ = P1
            t_ = P0
            for j in range(16): a.e(f'v_mul_f32 v{t_ + j}, {fbits(-LOG2E)}, v{f_ + j}')
            for j in range(16): a.e(f'v_exp_f32 v{t_ + j}, v{t_ + j}')
            for j in range(16): a.e(f'v_mul_f32 v{f_ + j}, v{f_ + j}, v{s_ + j}')
            for j in range(16): a.e(f'v_add_f32 v{t_ + j}, 1.0, v{t_ + j}')
            for j in range(16): a.e(f'v_rcp_f32 v{t_ + j}, v{t_ + j}')
            for j in range(16): a.e(f'v_fma_f32 v{f_ + j}, v{f_ + j}, v{t_ + j}, v{XU + j}')
            for i in range(8): a.e(f'v_cvt_pk_bf16_f32 v{t_ + i}, v{f_ + 2 * i}, v{f_ + 2 * i + 1}')
            for k in range(2):
                a.e(f'v_permlane32_swap_b32 v{t_ + 4 * k}, v{t_ + 4 * k + 2}')
                a.e(f'v_permlane32_swap_b32 v{t_ + 4 * k + 1}, v{t_ + 4 * k + 3}')
                a.e(f'buffer_store_dwordx4 {vr(t_ + 4 * k, 4)}, v{vXo}, {srd(sOUT)}, 0 offen offset:{32 * k}', tag='out')
            self.finish()

    def finish(self):
        a = self.a
        self.nlab += 1
        n = self.nlab
        a.m(f'''
        s_cmp_eq_u32 s2, 0
        s_cbranch_scc0 L_fin{n}
        v_cmp_eq_u32 vcc, 0, v0
        v_mov_b32 v1, {OOB}
        v_cndmask_b32 v1, v1, 0, vcc
        ''')
        a.e(f'buffer_store_dword v{self.vTag}, v1, {srd(sWS)}, 0 offen sc1', tag='ep')
        a.label(f'L_fin{n}')
        self.stamp(11)
        a.e('s_endpgm')

    def build(self):
        a = self.a
        self.entry()
        st = (list(a.vm), list(a.lg), list(a.hist), set(a.smem))
        self.g_role()
        gcyc, gn = a.cycles, a.nops
        a.vm, a.lg, a.hist, a.smem = list(st[0]), list(st[1]), list(st[2]), set(st[3])
        a.cycles = 0; a.mfma_free = 0
        self.q_role()
        sys.stderr.write(f'G issue-cycles {gcyc} nops {gn}; Q issue-cycles {a.cycles} nops {a.nops - gn}; counts {a.count}\n')
        body = a.text() + ''.join(self.slow) + 'L_exit:\n  s_endpgm\nL_codeend:\n'
        head = open(os.path.join(os.path.dirname(os.path.abspath(__file__)), '..', 'cdna_kernels', NAME + '.s.ref')).read().split('\n')
        hdr = [ln for ln in head if ln.startswith(';') and '@launch' not in ln]
        txt = '\n'.join(hdr) + f'\n; @launch grid=(256,1,1) block=(256,1,1) lds={LDS_BYTES}\n'
        txt += f'''.amdgcn_target "amdgcn-amd-amdhsa--gfx950"
.text
.globl {NAME}_kernel
.p2align 8
.type {NAME}_kernel,@function
{NAME}_kernel:
{body}.section .rodata,"a"
.p2align 6
.amdhsa_kernel {NAME}_kernel
  .amdhsa_next_free_vgpr 512
  .amdhsa_next_free_sgpr 102
  .amdhsa_accum_offset 256
  .amdhsa_group_segment_fixed_size 0
  .amdhsa_kernarg_size 80
  .amdhsa_user_sgpr_count 2
  .amdhsa_user_sgpr_kernarg_segment_ptr 1
  .amdhsa_system_sgpr_workgroup_id_x 1
.end_amdhsa_kernel
'''
        return txt

if __name__ == '__main__':
    opt = {}
    out = os.path.join(os.path.dirname(os.path.abspath(__file__)), '..', 'cdna_kernels', NAME + '.s')
    for x in sys.argv[1:]:
        if x.startswith('out='): out = x[4:]
        elif '=' in x: k, v = x.split('='); opt[k] = v
        else: opt[x] = True
    open(out, 'w').write(Gen(opt).build())
```

```python
import sys
sys.path.insert(0, 'mb'); sys.path.insert(0, 'cdna_kernels')
from mblib import *

def make(ntouch, x4, fl=''):
    s = f'''
  s_load_dwordx2 s[4:5], s[0:1], 56
  s_load_dwordx2 s[24:25], s[0:1], 0
  v_lshrrev_b32 v1, 6, v0
  v_and_b32 v2, 63, v0
  s_nop 0
  v_readfirstlane_b32 s14, v1
  s_mov_b32 s26, 0x8000000
  s_mov_b32 s27, 0x20000
  s_waitcnt lgkmcnt(0)
  s_mov_b32 s8, s4
  s_mov_b32 s9, s5
  s_mov_b32 s10, 0x100000
  s_mov_b32 s11, 0x20000
  s_lshl_b32 s15, s2, 10
  v_lshlrev_b32 v4, 4, v2
  v_add_u32 v4, s15, v4
  buffer_load_dwordx4 v[8:11], v4, s[24:27], 0 offen sc1
  s_waitcnt vmcnt(0)
  s_lshl_b32 s15, s2, 18
  s_add_u32 s15, s15, 0x100000
  v_lshlrev_b32 v5, {4 if x4 else 7}, v2
  v_add_u32 v5, s15, v5
  s_barrier
  s_cmp_eq_u32 s14, 0
  s_cbranch_scc0 L_w1_{ntouch}_{x4}_{fl}
  s_memtime s[40:41]
'''
    for i in range(ntouch):
        if x4 == 2:
            s += f'  s_mov_b32 s20, {i*1024}\n  buffer_store_dwordx4 v[8:11], v5, s[24:27], s20 offen {fl}\n'
        elif x4 == 3:
            s += f'  s_mov_b32 s20, {i*1024}\n  s_mov_b64 exec, 1\n  buffer_store_dword v8, v5, s[24:27], s20 offen {fl}\n  s_mov_b64 exec, -1\n'
        elif x4:
            s += f'  s_mov_b32 s20, {i*1024}\n  buffer_load_dwordx4 v[{12+4*(i%8)}:{15+4*(i%8)}], v5, s[24:27], s20 offen\n'
        else:
            s += f'  s_mov_b32 s20, {i*8192}\n  buffer_load_dword v{12+i%32}, v5, s[24:27], s20 offen\n'
    s += f'''
  s_memtime s[42:43]
  s_waitcnt vmcnt({max(ntouch-1,0)})
  s_memtime s[44:45]
  s_waitcnt vmcnt(0)
  s_memtime s[46:47]
  s_branch L_end_{ntouch}_{x4}_{fl}
L_w1_{ntouch}_{x4}_{fl}:
  s_memtime s[40:41]
  s_sleep 4
  s_memtime s[42:43]
  buffer_load_dwordx4 v[8:11], v4, s[24:27], 0 offen sc1
  s_memtime s[44:45]
  s_waitcnt vmcnt(0)
  s_memtime s[46:47]
L_end_{ntouch}_{x4}_{fl}:
  s_waitcnt lgkmcnt(0)
  s_sub_u32 s42, s42, s40
  s_sub_u32 s44, s44, s40
  s_sub_u32 s46, s46, s40
  s_lshl_b32 s12, s2, 5
  s_lshl_b32 s13, s14, 4
  s_add_u32 s12, s12, s13
  v_mov_b32 v2, s12
  v_mov_b32 v10, s42
  v_mov_b32 v11, s44
  v_mov_b32 v12, s46
  v_mov_b32 v13, 0
  buffer_store_dwordx4 v[10:13], v2, s[8:11], 0 offen
  s_waitcnt vmcnt(0)
'''
    return s
kern = []; tests = []
for x4, n, fl in [(1, 0, ''), (1, 1, ''), (2, 1, ''), (2, 1, 'sc1'), (2, 8, 'sc1'), (2, 8, ''), (3, 1, 'sc1'), (3, 1, ''), (2, 32, 'sc1')]:
    kern.append((f'k_{n}_{x4}_{fl}', make(n, x4, fl), 64)); tests.append(f'k_{n}_{x4}_{fl}')
if __name__ == '__main__':
    build('mb5b.s', kern)
    co = assemble('mb5b.s')
    if len(sys.argv) > 1 and sys.argv[1] == 'run':
        from cdna_launch import *
        from cdna_launch import _hip, _launch_function
        k = AsmKernel(co, kern[0][0], check=False)
        out = DeviceBuffer(1 << 20)
        src = DeviceBuffer(128 << 20)
        big = DeviceBuffer(512 << 20)
        hip_check(_hip.hipMemset(src.ptr, 1, 128 << 20))
        ka = pack_ptr_kernargs([src.ptr] * 7 + [out.ptr] * 3)
        for name in tests:
            f = k.function(name)
            for grid in (8, 256):
                res = []
                for rpt in range(5):
                    hip_check(_hip.hipMemset(big.ptr, rpt, 512 << 20))
                    hip_check(_hip.hipDeviceSynchronize())
                    _launch_function(f, (grid, 1, 1), (128, 1, 1), ka, 0, None)
                    hip_check(_hip.hipDeviceSynchronize())
                    o = out.to_numpy(np.uint32, (256, 2, 4))[:grid].astype(np.int64)
                    res.append(np.median(o, axis=0).reshape(-1))
                r = np.median(np.array(res), axis=0)
                print(f'{name:10s} grid {grid:3d}: wave0 issue-done {r[0]:.0f} first {r[1]:.0f} all {r[2]:.0f} | wave1 issue-at {r[4]:.0f} issued {r[5]:.0f} done {r[6]:.0f} cycles')
```
